```python
import torch

def _softmax(x, axis=-1):
    return torch.softmax(x, dim=axis)
def _gelu(x):
    return torch.nn.functional.gelu(x, approximate="tanh")
def _silu(x):
    return torch.nn.functional.silu(x)
def _sigmoid(x):
    return torch.sigmoid(x)
def _layernorm(x, axis=-1, eps=1e-5):
    m = x.mean(dim=axis, keepdim=True)
    v = x.var(dim=axis, keepdim=True, unbiased=False)
    return (x - m) / torch.sqrt(v + eps)
def _scatter_add(tgt, idx, src, axis=0):
    return tgt.clone().index_add_(axis, idx, src)
def _segment_sum(src, seg, n):
    out = torch.zeros((n,) + src.shape[1:], dtype=src.dtype)
    return out.index_add_(0, seg, src)
def _pad(x, pw):
    flat = tuple(v for pair in reversed(pw) for v in pair)
    return torch.nn.functional.pad(x, flat)

kernel_name = 'gated_mix__linear_kernel_hedgehog__dense_activation_silu__prompt'

def setup_inputs():

    _w = (lambda a: (lambda t: t.to(torch.bfloat16) if t.is_floating_point() else t)(torch.as_tensor(a)))
    def _A_setup():
        B, S, D, H = 1, 2048, 640, 32
        Dh = D // H
        return {
            "x": _w((lambda *s: torch.randn(*s, dtype=torch.bfloat16) * 0.1)(B, S, D)),
            "wqkv": _w((lambda *s: torch.randn(*s, dtype=torch.bfloat16) * 0.8)(D, 3 * D)),
            "w_phi": _w((lambda *s: torch.randn(*s, dtype=torch.bfloat16) * 0.8)(H, Dh, Dh) * (Dh ** -0.5)),
            "wo": _w((lambda *s: torch.randn(*s, dtype=torch.bfloat16) * 0.2)(D, D)),
        }
    _A_in = _A_setup()

    def _B_setup():
        B, S, D, F = 1, 2048, 640, 1728
        return {
            "x": _w((lambda *s: torch.randn(*s, dtype=torch.bfloat16) * 0.1)(B, S, D)),
            "w1": _w((lambda *s: torch.randn(*s, dtype=torch.bfloat16) * 3.2)(D, F) * (D ** -0.5)),
            "w2": _w((lambda *s: torch.randn(*s, dtype=torch.bfloat16) * 3.2)(F, D) * (F ** -0.5)),
        }
    _B_in = _B_setup()

    return {
        "A_x": _A_in["x"],
        "A_wqkv": _A_in["wqkv"],
        "A_w_phi": _A_in["w_phi"],
        "A_wo": _A_in["wo"],
        "B_x": _B_in["x"],
        "B_w1": _B_in["w1"],
        "B_w2": _B_in["w2"],
        "gate_w": _w((lambda *s: torch.randn(*s, dtype=torch.bfloat16) * 0.1)(640) * 16.0),
    }

def reference(A_x, A_wqkv, A_w_phi, A_wo, B_x, B_w1, B_w2, gate_w):
    def _A_ref(x, wqkv, w_phi, wo):
        B, S, D = x.shape
        H = 32; Dh = D // H
        qkv = (lambda x, *d: x.permute(*d))((x @ wqkv).reshape(B, S, 3, H, Dh), 2, 0, 3, 1, 4)
        q, k, v = qkv[0], qkv[1], qkv[2]
        pq = torch.einsum("bhsd,hdf->bhsf", q, w_phi)
        pk = torch.einsum("bhsd,hdf->bhsf", k, w_phi)
        phi_q = torch.concatenate([_softmax(pq, axis=-1), _softmax(-pq, axis=-1)], axis=-1)
        phi_k = torch.concatenate([_softmax(pk, axis=-1), _softmax(-pk, axis=-1)], axis=-1)
        kv = torch.einsum("bhsf,bhsd->bhfd", phi_k, v)
        z  = torch.einsum("bhsf->bhf", phi_k)
        num = torch.einsum("bhqf,bhfd->bhqd", phi_q, kv)
        den = torch.einsum("bhqf,bhf->bhq", phi_q, z)[..., None] + 1e-6
        o = num / den
        return (lambda x, *d: x.permute(*d))(o, 0, 2, 1, 3).reshape(B, S, D) @ wo

    def _B_ref(x, w1, w2):
        h = torch.einsum("bsd,df->bsf", x, w1)
        h = _silu(h)
        out = torch.einsum("bsf,fd->bsd", h, w2)
        return out

    x = A_x
    g = _sigmoid((x * gate_w).sum(-1, keepdims=True))
    a = _A_ref(x, A_wqkv, A_w_phi, A_wo)
    b = _B_ref(x, B_w1, B_w2)
    return g * a + (1 - g) * b
```

```python
import re, copy

TRANS = ('v_exp_f32', 'v_log_f32', 'v_rcp_f32', 'v_rsq_f32', 'v_sqrt_f32', 'v_sin_f32', 'v_cos_f32')
_reg_re = re.compile(r'^(-|\|)?([vs])(\d+)\|?$')
_rng_re = re.compile(r'^(-|\|)?([vs])\[(\d+):(\d+)\]\|?$')


def parse_op(tok):
    tok = tok.strip()
    m = _reg_re.match(tok)
    if m:
        return m.group(2), {int(m.group(3))}
    m = _rng_re.match(tok)
    if m:
        return m.group(2), set(range(int(m.group(3)), int(m.group(4)) + 1))
    if tok == 'vcc':
        return 's', {106, 107}
    if tok == 'vcc_lo':
        return 's', {106}
    if tok == 'vcc_hi':
        return 's', {107}
    if tok == 'm0':
        return 's', {124}
    if tok == 'exec':
        return 's', {126, 127}
    if tok == 'exec_lo':
        return 's', {126}
    if tok == 'exec_hi':
        return 's', {127}
    return None, set()


class Ins:
    __slots__ = ('text', 'op', 'kind', 'vd', 'vu', 'sd', 'su', 'srcA', 'srcB', 'srcC', 'passes', 'trans', 'dpp',
                 'wide_data', 'lds_dma', 'ws', 'dot', 'tag', 'opsel')

    def __init__(self, text):
        self.text = text
        t = text.split(';')[0].strip()
        parts = t.split(None, 1)
        self.op = op = parts[0]
        rest = parts[1] if len(parts) > 1 else ''
        toks = [x.strip() for x in rest.split(',')] if rest else []
        mods = []
        if toks:
            last = toks[-1].split()
            if last:
                toks[-1] = last[0]
                mods = last[1:]
        self.vd, self.vu, self.sd, self.su = set(), set(), set(), set()
        self.srcA = self.srcB = self.srcC = set()
        self.passes = 0
        self.trans = False
        self.dpp = any(m.startswith(('quad_perm', 'row_', 'wave_', 'row_bcast')) for m in mods)
        self.opsel = any(m.startswith('op_sel:') or m.startswith('dst_sel') for m in mods) and not op.startswith('v_pk_') and not op.startswith('v_dot')
        self.wide_data = set()
        self.lds_dma = False
        self.ws = 1
        self.dot = op.startswith('v_dot')
        self.tag = None
        ops = [parse_op(x) for x in toks]

        def use(o):
            k, r = o
            if k == 'v':
                self.vu |= r
            elif k == 's':
                self.su |= r

        def dfn(o):
            k, r = o
            if k == 'v':
                self.vd |= r
            elif k == 's':
                self.sd |= r

        if op.startswith('v_mfma'):
            self.kind = 'mfma'
            dfn(ops[0])
            for o in ops[1:4]:
                use(o)
            self.srcA, self.srcB = ops[1][1], ops[2][1]
            self.srcC = ops[3][1] if ops[3][0] == 'v' else set()
            self.passes = 8 if '32x32x16' in op else 4
            assert '32x32x16' in op or '16x16x32' in op
        elif op.startswith('v_'):
            self.kind = 'valu'
            base = op.replace('_e32', '').replace('_e64', '').replace('_dpp', '').replace('_sdwa', '')
            self.trans = base in TRANS
            if base.startswith('v_permlane'):
                for o in ops:
                    use(o); dfn(o)
            elif base.startswith('v_cmp'):
                dfn(ops[0])
                for o in ops[1:]:
                    use(o)
            elif base in ('v_add_co_u32', 'v_sub_co_u32', 'v_addc_co_u32', 'v_subrev_co_u32'):
                dfn(ops[0]); dfn(ops[1])
                for o in ops[2:]:
                    use(o)
            elif base == 'v_nop':
                pass
            else:
                dfn(ops[0])
                for o in ops[1:]:
                    use(o)
                if base.startswith(('v_fmac', 'v_dot2c', 'v_mac', 'v_pk_fmac')) or self.dpp:
                    use(ops[0])
        elif op.startswith('ds_'):
            self.kind = 'ds'
            if op.startswith('ds_read') or op.startswith('ds_bpermute') or op.startswith('ds_permute') or op.startswith('ds_swizzle'):
                dfn(ops[0])
                for o in ops[1:]:
                    use(o)
            else:
                for o in ops:
                    use(o)
        elif op.startswith(('buffer_', 'global_')):
            self.kind = 'vmem'
            if 'lds' in mods:
                self.lds_dma = True
                for o in ops:
                    use(o)
                self.su |= {124}
            elif '_load' in op:
                dfn(ops[0])
                for o in ops[1:]:
                    use(o)
            elif '_store' in op or '_atomic' in op:
                for o in ops:
                    use(o)
                if op.endswith(('x3', 'x4')):
                    self.wide_data = ops[0][1] if op.startswith('buffer_') else ops[1][1]
            else:
                raise ValueError(text)
        elif op.startswith('s_'):
            if op.startswith(('s_load', 's_memrealtime', 's_memtime', 's_buffer_load')):
                self.kind = 'smem'
                dfn(ops[0])
                for o in ops[1:]:
                    use(o)
            elif op == 's_nop':
                self.kind = 'ctl'
                self.ws = int(toks[0], 0) + 1
            elif op.startswith(('s_waitcnt', 's_barrier', 's_branch', 's_cbranch', 's_endpgm', 's_setprio', 's_sleep')):
                self.kind = 'ctl'
            elif op.startswith(('s_cmp', 's_bitcmp')):
                self.kind = 'salu'
                for o in ops:
                    use(o)
            else:
                self.kind = 'salu'
                dfn(ops[0])
                for o in ops[1:]:
                    use(o)
                if 'saveexec' in op:
                    self.sd |= {126, 127}
        else:
            raise ValueError('unknown op: ' + text)


def required(p, c):
    req = 0
    if p.kind == 'valu':
        hit = p.vd & c.vu
        if hit:
            if c.kind == 'mfma':
                req = max(req, 2)
            if c.dpp or c.op.startswith('v_permlane'):
                req = max(req, 2)
            if c.op.startswith(('v_readlane', 'v_readfirstlane')):
                req = max(req, 1)
            if p.trans or p.opsel:
                req = max(req, 1)
        if p.dot and (p.vd & (c.vu | c.vd)):
            if c.op == p.op:
                toks = [x.strip().split()[0] for x in c.text.split(';')[0].strip().split(None, 1)[1].split(',')]
                ab = set()
                for t in toks[1:3]:
                    k, r = parse_op(t)
                    if k == 'v':
                        ab |= r
                if p.vd & ab:
                    req = max(req, 3)
            else:
                req = max(req, 3)
        if p.sd:
            hs = p.sd & c.su
            if hs:
                if c.kind == 'vmem':
                    req = max(req, 5)
                elif c.kind in ('valu', 'mfma'):
                    req = max(req, 4 if c.op.startswith(('v_readlane', 'v_writelane')) else 2)
                elif c.kind in ('salu', 'smem'):
                    req = max(req, 1)
            if (p.sd & {126, 127}) and c.kind in ('valu', 'mfma'):
                req = max(req, 5)
    elif p.kind == 'mfma':
        big = 12 if p.passes == 8 else 8
        mid = 10 if p.passes == 8 else 6
        war = 7 if p.passes == 8 else 3
        D = p.vd
        if c.kind == 'mfma':
            if c.srcC & D:
                if not (c.srcC == D and c.op == p.op):
                    req = max(req, mid)
            if (c.srcA | c.srcB) & D:
                req = max(req, big)
            if (c.vd & D) and not (c.srcC == D and c.vd == D and c.op == p.op):
                req = max(req, big)
        elif c.kind in ('valu', 'vmem', 'ds'):
            if (c.vu | c.vd) & D:
                req = max(req, big)
        if c.kind in ('valu', 'vmem', 'ds') and (c.vd & p.srcC):
            req = max(req, war)
    elif p.kind == 'vmem':
        if p.wide_data and (c.vd & p.wide_data):
            req = max(req, 2 if c.kind in ('valu', 'mfma') else 1)
    elif p.kind == 'salu':
        if 124 in p.sd and c.lds_dma:
            req = max(req, 1)
    return req


class Asm:
    def __init__(self):
        self.lines = []
        self.hists = [[]]
        self.vmqs = [[]]
        self.lgq = []
        self.smem = False
        self.smem_defs = set()
        self.nlabel = 0
        self.stats = {'nop': 0, 'ins': 0}
        self.maxv = 0
        self.maxs = 0

    def raw(self, s):
        self.lines.append(s)

    def comment(self, s):
        self.lines.append('    ; ' + s)

    def label(self, name):
        self.lines.append(name + ':')

    def newlabel(self, p='L'):
        self.nlabel += 1
        return '%s_%d' % (p, self.nlabel)

    def _push(self, ins):
        self.lines.append('    ' + ins.text)
        for h in self.hists:
            h.append(ins)
            if len(h) > 24:
                h.pop(0)
        if len(self.hists) > 1:
            out = []
            for h in self.hists:
                if not any(len(h) == len(g) and all(x is y for x, y in zip(h, g)) for g in out):
                    out.append(h)
            self.hists = out
        self.stats['ins'] += 1

    def _pad(self, ins):
        need = 0
        for h in self.hists:
            dist = 0
            for p in reversed(h):
                r = required(p, ins)
                if r - dist > need:
                    need = r - dist
                dist += p.ws
                if dist > 20:
                    break
        while need > 0:
            n = min(need, 8)
            self._push(Ins('s_nop %d' % (n - 1)))
            self.stats['nop'] += n
            need -= n

    def _dedupe(self):
        out = []
        for q in self.vmqs:
            if q not in out:
                out.append(q)
        self.vmqs = out

    def _wait(self, vm=None, lg=None):
        parts = []
        if vm is not None:
            vm = min(vm, 63)
            parts.append('vmcnt(%d)' % vm)
            self.vmqs = [(q[len(q) - vm:] if vm else []) if len(q) > vm else q for q in self.vmqs]
            self._dedupe()
        if lg is not None:
            if self.smem:
                lg = 0
            lg = min(lg, 15)
            parts.append('lgkmcnt(%d)' % lg)
            if len(self.lgq) > lg:
                self.lgq = self.lgq[len(self.lgq) - lg:] if lg else []
            if lg == 0:
                self.smem = False
                self.smem_defs = set()
        self._push(Ins('s_waitcnt ' + ' '.join(parts)))

    def _vm_need(self, pred):
        vm = None
        for q in self.vmqs:
            for i, (t, d) in enumerate(q):
                if pred(t, d):
                    n = len(q) - 1 - i
                    vm = n if vm is None else min(vm, n)
        return vm

    def wait_vm_tag(self, *tags):
        vm = self._vm_need(lambda t, d: t in tags)
        if vm is not None:
            self._wait(vm=vm)

    def wait_lg_tag(self, *tags):
        idx = -1
        for i, (t, d) in enumerate(self.lgq):
            if t in tags:
                idx = i
        if idx >= 0:
            self._wait(lg=len(self.lgq) - 1 - idx)

    def wait_vm(self, n=0):
        if max(len(q) for q in self.vmqs) > n:
            self._wait(vm=n)

    def wait_lg(self, n=0):
        if len(self.lgq) > n or self.smem:
            self._wait(lg=n)

    def barrier(self):
        self.e('s_barrier')

    def e(self, text, tag=None):
        ins = Ins(text)
        ins.tag = tag
        regs = ins.vu | ins.vd
        for r in regs:
            self.maxv = max(self.maxv, r + 1)
        for r in (ins.su | ins.sd):
            if r < 106:
                self.maxs = max(self.maxs, r + 1)
        lg = None
        vm = self._vm_need(lambda t, d: d & regs)
        for i, (t, d) in enumerate(self.lgq):
            if d & regs:
                lg = len(self.lgq) - 1 - i
        if self.smem and (self.smem_defs & (ins.su | ins.sd)):
            lg = 0
        if vm is not None or lg is not None:
            self._wait(vm, lg)
        self._pad(ins)
        self._push(ins)
        if ins.kind == 'vmem':
            for q in self.vmqs:
                q.append((tag, frozenset(ins.vd)))
                assert len(q) <= 63, 'vmcnt overflow'
        elif ins.kind == 'ds':
            self.lgq.append((tag, set(ins.vd)))
        elif ins.kind == 'smem':
            self.smem = True
            self.smem_defs |= ins.sd
        return ins

    def snapshot(self):
        return ([list(h) for h in self.hists], [list(q) for q in self.vmqs], list(self.lgq), self.smem, set(self.smem_defs))

    def restore(self, s):
        self.hists, self.vmqs, self.lgq, self.smem, self.smem_defs = [list(h) for h in s[0]], [list(q) for q in s[1]], list(s[2]), s[3], set(s[4])

    def merge(self, a, b):
        self.vmqs = [list(q) for q in a[1]] + [list(q) for q in b[1]]
        self._dedupe()
        la, lb = a[2], b[2]
        if len(la) < len(lb):
            la, lb = lb, la
        assert la[len(la) - len(lb):] == lb, 'lds queues differ at merge'
        self.lgq = list(la)
        self.smem = a[3] or b[3]
        self.smem_defs = a[4] | b[4]
        self.hists = [list(h) for h in a[0]] + [list(h) for h in b[0]]

    def text(self):
        return '\n'.join(self.lines) + '\n'
```

```python
import sys, argparse
from asmfw import Asm

NAME = 'gated_mix__linear_kernel_hedgehog__dense_activation_silu__prompt'
KLABEL = NAME + '_kernel'

EPOCH_OFF = 0x0
WQ_OFF = 0x1000
WPHI_OFF = 0x290000
W2P_OFF = 0x300000
ACT_OFF = 0x600000
KVP_OFF = 0x1000000
KVP_STRIDE = 3584
G_OFF = 0x1100000
AF_OFF = 0x1110000
BF_OFF = 0x1118000
HF_OFF = 0x1120000
DUMP_OFF = 0x2000000
STAMP_OFF = 200 << 20
ACT_PT = 74 * 1024
BIG = '2.0'
BIGV = 0x40000000
LOG2E = 1.4426950408889634

SRD_X, SRD_W1, SRD_WS, SRD_WQKV, SRD_W2O, SRD_WPHI, SRD_GW, SRD_DBG, SRD_OUT = 4, 8, 12, 16, 20, 24, 28, 32, 36
SRD_CODE = 36
SRD_CODE = 52


BIGS = 101


def f2u(x):
    import struct
    return struct.unpack('<I', struct.pack('<f', x))[0]


def srd(n):
    return 's[%d:%d]' % (n, n + 3)


def vr(a, n=1):
    return 'v%d' % a if n == 1 else 'v[%d:%d]' % (a, a + n - 1)


def sr(a, n=1):
    return 's%d' % a if n == 1 else 's[%d:%d]' % (a, a + n - 1)


class S:
    W, R, C, RB, CB, PT, FH, W2K = 62, 63, 64, 65, 66, 67, 68, 69
    ST, XS, WS, QS, QST = 70, 71, 72, 73, 74
    HK0 = 75
    CNT = 76
    KQ, P32 = 77, 78
    TAG = 100
    WS4 = 30
    D0, D1 = 98, 99
    PS = 31
    NL2E, ONE2 = 32, 34
    WPS, APS, W5K, WPHS, L2E = 16, 17, 18, 19, 20
    WRS, ARS = 22, 26
    KVS = 28
    T0, T1, T2, T3, T4, T5, T6, T7 = 40, 41, 42, 43, 44, 45, 46, 47
    M0, M1, M2, M3 = 48, 50, 52, 54
    STAMP = 80


class V:
    LANE, L16 = 1, 2
    QR = 3
    M6, M7 = 6, 7
    AS = 8
    ACCH = 32
    ACCQ = 64
    X = 96
    XO0, XO1, WO0, WO1 = 64, 65, 66, 67
    XR = 68
    TR = 80
    HT = 84
    WPH = 176
    G1 = 6
    AV = [2, 3, 4, 5]
    ACTB = 112
    ACC2 = 176
    WB = 8


class Gen:
    def __init__(self, opt):
        self.o = opt
        self.a = Asm()
        self.nstamp = 0

    def e(self, t, tag=None):
        return self.a.e(t, tag)

    def stamp(self, name):
        if self.o.stamps and name in self.o.st:
            assert self.nstamp < 8
            self.e('%s %s' % ('s_memtime' if self.o.stamps == 2 else 's_memrealtime', sr(S.STAMP + 2 * self.nstamp, 2)))
            self.nstamp += 1

    def csel(self, d, x, y):
        self.e('s_mov_b32 s%d, %s' % (d, y))
        self.e('s_cmov_b32 s%d, %s' % (d, x))

    def mk_srd(self, n, ptr, size):
        e = self.e
        e('s_mov_b32 s%d, s%d' % (n, ptr))
        e('s_mov_b32 s%d, s%d' % (n + 1, ptr + 1))
        e('s_mov_b32 s%d, %d' % (n + 2, size))
        e('s_mov_b32 s%d, 0x00020000' % (n + 3))

    def dma(self, m0base, m0off, voff, sr_, so, imm, tag, sc1=False, pre=None, post=None):
        def f():
            if pre:
                pre()
            self.e('s_add_u32 m0, s%d, %d' % (m0base, m0off))
            self.e('buffer_load_dwordx4 v%d, %s, s%d offen%s%s lds' % (voff, srd(sr_), so, ' offset:%d' % imm if imm else '', ' sc1' if sc1 else ''), tag)
            if post:
                post()
        return f

    def load_x(self, slot, tag, post=None):
        return [self.dma(S.W2K, slot * 16384, V.XO0, SRD_X, S.XS, 0, tag),
                self.dma(S.W2K, slot * 16384, V.XO1, SRD_X, S.XS, 1024, tag, post=post)]

    def load_w(self, slot, tag, so=None, post=None):
        so = S.WS if so is None else so
        return [self.dma(S.W2K, slot * 16384, V.WO0, SRD_W1, so, 0, tag),
                self.dma(S.W2K, slot * 16384, V.WO1, SRD_W1, so, 1024, tag, post=post)]

    def adv_xw(self):
        e = self.e
        t0, t1 = S.D0, S.D1
        e('s_add_u32 s%d, s%d, 1' % (S.ST, S.ST))
        e('s_cmp_eq_u32 s%d, 10' % S.ST)
        self.csel(t0, 128 - 1280, 128)
        self.csel(t1, 221184 - 2211840, 221184)
        e('s_cselect_b32 s%d, 0, s%d' % (S.ST, S.ST))
        e('s_add_u32 s%d, s%d, s%d' % (S.XS, S.XS, t0))
        e('s_add_u32 s%d, s%d, s%d' % (S.WS, S.WS, t1))

    def load_xw(self, u):
        adv = self.adv_xw if u < 9 else None
        if u == 4:
            def p():
                self.e('s_mov_b32 s%d, s%d' % (S.WS4, S.WS))
                self.adv_xw()
            return self.load_x(8, 'x4', post=p)
        return self.load_x((2 * u) % 10, 'x%d' % u) + self.load_w((2 * u + 1) % 10, 'w%d' % u, post=adv)

    def load_q(self, u):
        def adv():
            e = self.e
            e('s_add_u32 s%d, s%d, 1' % (S.QST, S.QST))
            e('s_cmp_eq_u32 s%d, 10' % S.QST)
            self.csel(S.D0, 16384 - 163840, 16384)
            e('s_cselect_b32 s%d, 0, s%d' % (S.QST, S.QST))
            e('s_add_u32 s%d, s%d, s%d' % (S.QS, S.QS, S.D0))
        return [self.dma(S.W2K, u * 16384, V.L16, SRD_WS, S.QS, 0, 'q%d' % u, sc1=True),
                self.dma(S.W2K, u * 16384, V.L16, SRD_WS, S.QS, 1024, 'q%d' % u, sc1=True, post=adv if u < 9 else None)]

    def run(self, lst):
        for f in lst:
            f()

    def prologue(self):
        a, e, o = self.a, self.e, self.o
        L = V.LANE
        e('s_cmp_ge_u32 s2, 256')
        e('s_cbranch_scc1 L_END')
        e('s_load_dwordx16 s[40:55], s[0:1], 0')
        e('s_load_dwordx4 s[56:59], s[0:1], 64')
        e('s_load_dwordx2 s[60:61], s[0:1], 80')
        self.stamp('start')
        e('v_lshrrev_b32 v3, 6, v0')
        e('v_and_b32 v%d, 63, v0' % V.LANE)
        e('v_readfirstlane_b32 s%d, v3' % S.W)
        e('v_lshlrev_b32 v%d, 4, v%d' % (V.L16, V.LANE))
        t0, t1, t2, t3 = 79, S.CNT, S.KQ, S.P32
        e('s_and_b32 s%d, s2, 7' % t0)
        e('s_bfe_u32 s%d, s2, 0x30003' % t2)
        e('s_lshr_b32 s%d, s2, 6' % t3)
        e('s_and_b32 s%d, s%d, 4' % (S.CB, t0))
        e('s_add_u32 s%d, s%d, s%d' % (S.CB, S.CB, t3))
        e('s_and_b32 s%d, s%d, 3' % (S.RB, t0))
        e('s_lshl_b32 s%d, s%d, 3' % (S.RB, S.RB))
        e('s_add_u32 s%d, s%d, s%d' % (S.RB, S.RB, t2))
        e('s_and_b32 s%d, s%d, 15' % (S.R, S.RB))
        e('s_and_b32 s%d, s%d, 6' % (S.C, t0))
        e('s_lshl_b32 s%d, s%d, 1' % (S.C, S.C))
        e('s_add_u32 s%d, s%d, s%d' % (S.C, S.C, t3))
        e('s_lshl_b32 s%d, s%d, 11' % (S.W2K, S.W))
        e('s_mov_b32 s%d, %d' % (BIGS, BIGV))
        SCR = self.SCR = 8 * 16384
        T = self.T = V.X + 70
        e('v_and_b32 v%d, 3, v%d' % (T + 9, L))
        e('s_cmp_ge_u32 s%d, 3' % S.W)
        e('s_cbranch_scc1 L_ROLEA')
        snap = a.snapshot()
        KS = self.KS = 79
        e('s_lshl_b32 s%d, s%d, 5' % (KS, S.W))
        e('s_add_u32 s%d, s%d, s%d' % (KS, KS, S.RB))
        e('s_sub_u32 s%d, s%d, 54' % (t1, KS))
        e('s_cmp_ge_u32 s%d, 54' % KS)
        e('s_cselect_b32 s%d, s%d, s%d' % (t1, t1, KS))
        e('s_cselect_b32 s%d, 1, 0' % t2)
        e('s_lshl_b32 s%d, s%d, 2' % (t1, t1))
        e('v_add_u32 v%d, s%d, v%d' % (T, t1, T + 9))
        e('v_mul_u32_u24 v%d, 205, v%d' % (T + 1, T))
        e('v_lshrrev_b32 v%d, 10, v%d' % (T + 1, T + 1))
        e('v_mul_u32_u24 v%d, 5, v%d' % (T + 1, T + 1))
        e('v_sub_u32 v%d, v%d, v%d' % (T + 1, T, T + 1))
        e('v_mul_u32_u24 v%d, s%d, v%d' % (T + 1, t2, T + 1))
        e('v_cmp_le_u32 vcc, 2, v%d' % (T + 1))
        e('v_mul_u32_u24 v%d, 6554, v%d' % (T + 5, L))
        e('v_lshrrev_b32 v%d, 16, v%d' % (T + 5, T + 5))
        e('v_cndmask_b32_e64 v%d, 0, 4, vcc' % (T + 2))
        e('v_cmp_eq_u32 vcc, 4, v%d' % (T + 1))
        e('v_mul_u32_u24 v%d, 1120, v%d' % (T + 5, T + 5))
        e('v_add_u32 v%d, v%d, v%d' % (T + 5, T + 5, V.L16))
        e('v_cndmask_b32_e64 v%d, v%d, -16, vcc' % (T + 2, T + 2))
        e('v_cndmask_b32_e64 v%d, 4, 20, vcc' % (T + 3))
        e('v_lshl_add_u32 v%d, v%d, 3, v%d' % (T + 2, T, T + 2))
        e('v_add_u32 v%d, v%d, v%d' % (T + 3, T + 3, T + 2))
        e('s_mul_i32 s%d, s%d, 160' % (t3, S.CB))
        e('v_mov_b32 v%d, 1280' % (T + 4))
        e('v_mad_u32_u24 v%d, v%d, v%d, s%d' % (T + 2, T + 2, T + 4, t3))
        e('v_mad_u32_u24 v%d, v%d, v%d, s%d' % (T + 3, T + 3, T + 4, t3))
        RBS = 84
        RBS = SRD_WQKV
        rb = [16, 17, 18, 19, 24, 25, 26, 27]
        for i in range(8):
            e('v_readlane_b32 s%d, v%d, %d' % (rb[i], T + 2 + (i & 1), i >> 1))
        BSC = self.BSC = 28
        e('s_mul_i32 s%d, s%d, 5120' % (BSC, S.W))
        e('s_add_u32 s%d, s%d, %d' % (BSC, BSC, SCR + 16384))
        e('s_cmp_ge_u32 s%d, 54' % KS)
        self.csel(SRD_W2O + 2, 819200, 2211840)
        e('s_mov_b32 s%d, 0x00020000' % (SRD_W2O + 3))
        e('s_cselect_b32 s%d, s46, s52' % SRD_W2O)
        e('s_cselect_b32 s%d, s47, s53' % (SRD_W2O + 1))
        self.rb = rb
        self.stamp('ka')
        if o.bearly:
            self.b_dma()
        e('s_branch L_JOINA')
        endB = a.snapshot()
        a.restore(snap)
        self.nstamp -= 1 if (o.stamps and 'ka' in o.st) else 0
        a.label('L_ROLEA')
        O = self.O = 79
        e('s_mul_i32 s%d, s%d, 5' % (O, S.R))
        e('s_add_u32 s%d, s%d, s%d' % (O, O, S.W))
        e('s_sub_u32 s%d, s%d, 3' % (O, O))
        e('s_mul_i32 s%d, s%d, %d' % (t1, O, 8 * 3840))
        e('s_mul_i32 s%d, s%d, 80' % (t2, S.C))
        e('s_add_u32 s%d, s%d, s%d' % (t1, t1, t2))
        e('s_add_u32 s%d, s%d, %d' % (t2, t1, 4 * 3840 - 960))
        e('v_mul_u32_u24 v%d, 4370, v%d' % (T, L))
        e('v_lshrrev_b32 v%d, 16, v%d' % (T, T))
        e('v_mul_u32_u24 v%d, 15, v%d' % (T + 1, T))
        e('v_sub_u32 v%d, v%d, v%d' % (T + 1, L, T + 1))
        e('v_mul_u32_u24 v%d, 52, v%d' % (T + 2, T + 1))
        e('v_lshrrev_b32 v%d, 8, v%d' % (T + 2, T + 2))
        e('v_mul_u32_u24 v%d, 3840, v%d' % (T, T))
        e('v_lshl_add_u32 v%d, v%d, 4, v%d' % (T, T + 1, T))
        e('v_mul_u32_u24 v%d, 1200, v%d' % (T + 2, T + 2))
        e('v_add_u32 v%d, v%d, v%d' % (T, T, T + 2))
        WPH = SRD_W2O
        e('s_cmp_ge_u32 s%d, 6' % S.R)
        e('s_cselect_b32 s%d, 1, 0' % WPH)
        e('s_lshl_b32 s%d, s%d, 1' % (t3, S.C))
        e('s_add_u32 s%d, s%d, s%d' % (t3, t3, WPH))
        e('s_mul_i32 s%d, s%d, 800' % (t3, t3))
        e('s_cmp_eq_u32 s%d, 3' % S.W)
        e('s_cselect_b32 s%d, s%d, %d' % (t3, t3, BIGV))
        WPS = self.WPS = SCR + 10240
        e('s_cselect_b32 s%d, 0, 0x400' % (WPH + 1))
        e('v_cmp_gt_u32 vcc, 50, v%d' % L)
        e('s_lshl_b32 s%d, s%d, 4' % (WPH + 2, O))
        e('s_add_u32 m0, s%d, %d' % (S.W2K, SCR - 3 * 2048))
        e('v_cndmask_b32_e64 v%d, %s, v%d, vcc' % (T + 1, BIG, V.L16))
        e('s_mov_b32 exec_hi, 0x0fffffff')
        self.mk_srd(SRD_WQKV, 42, 2457600)
        self.stamp('ka')
        e('buffer_load_dwordx4 v%d, %s, s%d offen lds' % (T, srd(SRD_WQKV), t1), 'g0')
        e('buffer_load_dwordx4 v%d, %s, s%d offen offset:960 lds' % (T, srd(SRD_WQKV), t2), 'g0')
        e('s_mov_b32 exec_hi, -1')
        self.mk_srd(SRD_WPHI, 44, 25600)
        e('s_add_u32 m0, s%d, %d' % (WPH + 1, WPS))
        self.mk_srd(SRD_GW, 54, 1280)
        e('buffer_load_dwordx4 v%d, %s, s%d offen lds' % (T + 1, srd(SRD_WPHI), t3), 'g0')
        e('buffer_load_dwordx4 %s, off, %s, s%d' % (vr(V.X + 16, 4), srd(SRD_GW), WPH + 2), 'g0')
        endA = a.snapshot()
        a.label('L_JOINA')
        a.merge(endA, endB)
        self.mk_srd(SRD_WS, 60, 268435456)
        e('buffer_load_dword v%d, off, %s, 0 offset:%d sc1' % (V.M6, srd(SRD_WS), EPOCH_OFF), 'g0')
        self.mk_srd(SRD_X, 40, 2621440)
        self.mk_srd(SRD_W1, 50, 2211840)
        self.mk_srd(SRD_OUT, 56, 2621440)
        t0 = S.T0
        e('s_and_b32 s%d, s%d, 3' % (S.PT, S.W))
        e('s_lshr_b32 s%d, s%d, 2' % (S.FH, S.W))
        e('s_add_u32 s%d, s%d, s%d' % (t0, S.R, S.C))
        if o.rot:
            e('s_mul_i32 s%d, s%d, 26' % (t1, t0))
            e('s_lshr_b32 s%d, s%d, 8' % (t1, t1))
            e('s_mul_i32 s%d, s%d, 10' % (t1, t1))
            e('s_sub_u32 s%d, s%d, s%d' % (S.ST, t0, t1))
        else:
            e('s_mov_b32 s%d, 0' % S.ST)
        e('s_mov_b32 s%d, s%d' % (S.QST, S.ST))
        e('s_lshl_b32 s%d, s%d, 3' % (t0, S.R))
        e('s_add_u32 s%d, s%d, s%d' % (t0, t0, S.W))
        e('s_mul_i32 s%d, s%d, 20480' % (t0, t0))
        e('s_lshl_b32 s%d, s%d, 7' % (t1, S.ST))
        e('s_add_u32 s%d, s%d, s%d' % (S.XS, t0, t1))
        e('v_lshrrev_b32 v3, 3, v%d' % L)
        e('v_mul_u32_u24 v3, 1280, v3')
        e('v_and_b32 v4, 7, v%d' % L)
        e('v_lshrrev_b32 v%d, 4, v%d' % (T + 10, L))
        e('v_xor_b32 v4, v4, v%d' % (T + 10))
        e('v_lshl_add_u32 v%d, v4, 4, v3' % V.XO0)
        e('v_xor_b32 v%d, 64, v%d' % (V.XO1, V.XO0))
        e('v_add_u32 v%d, %d, v%d' % (V.XO1, 8 * 1280 - 1024, V.XO1))
        e('s_lshl_b32 s%d, s%d, 8' % (t0, S.C))
        e('s_lshl_b32 s%d, s%d, 7' % (t1, S.C))
        e('s_add_u32 s%d, s%d, 1408' % (t1, t1))
        e('s_min_u32 s%d, s%d, s%d' % (t0, t0, t1))
        e('s_lshr_b32 s%d, s%d, 6' % (S.HK0, t0))
        e('s_lshl_b32 s%d, s%d, 3' % (t1, S.ST))
        e('s_add_u32 s%d, s%d, s%d' % (t1, t1, S.W))
        e('s_mul_i32 s%d, s%d, %d' % (t1, t1, 8 * 3456))
        e('s_add_u32 s%d, s%d, s%d' % (S.WS, t0, t1))
        e('v_bfe_u32 v%d, v%d, 2, 2' % (T + 8, L))
        e('v_mul_u32_u24 v3, 3456, v%d' % (T + 8))
        e('v_lshl_add_u32 v3, v%d, 6, v3' % (T + 10))
        e('v_lshl_add_u32 v3, v%d, 4, v3' % (T + 9))
        e('s_cmp_ge_u32 s%d, 11' % S.C)
        e('s_cselect_b32 vcc_hi, 0, -1')
        e('s_mov_b32 vcc_lo, -1')
        e('v_cndmask_b32_e64 v%d, %s, v3, vcc' % (V.WO0, BIG))
        e('v_add_u32 v%d, %d, v%d' % (V.WO1, 4 * 3456 - 1024, V.WO0))
        if o.p0bar:
            a.barrier()
        for u in range(0, o.nfirst):
            self.run(self.load_xw(u))

    def b_dma(self):
        e = self.e
        e('s_mov_b32 exec_hi, 0xff')
        for i in range(8):
            e('s_add_u32 m0, s%d, %d' % (self.BSC, 640 * i))
            e('buffer_load_dwordx4 v%d, %s, s%d offen lds' % (self.T + 5, srd(SRD_W2O), self.rb[i]), 'gb')
        e('s_mov_b32 exec_hi, -1')

    def b_process(self):
        a, e = self.a, self.e
        L = V.LANE
        T = V.X + 110
        G = V.X + 120
        KS, BSC = self.KS, self.BSC
        lj = a.newlabel('L_BJ')
        e('s_cmp_ge_u32 s%d, 3' % S.W)
        e('s_cbranch_scc1 %s' % lj)
        snap = a.snapshot()
        e('v_lshrrev_b32 v%d, 4, v%d' % (T, L))
        e('v_mul_u32_u24 v%d, 1280, v%d' % (T, T))
        e('v_bfe_u32 v%d, v%d, 2, 2' % (T + 1, L))
        e('v_mul_u32_u24 v%d, 160, v%d' % (T + 1, T + 1))
        e('v_and_b32 v%d, 3, v%d' % (T + 2, L))
        e('v_lshl_add_u32 v%d, v%d, 3, v%d' % (T, T + 2, T))
        e('v_add3_u32 v%d, v%d, v%d, s%d' % (T, T, T + 1, BSC))
        e('s_mul_i32 s%d, s%d, 74' % (S.T4, S.CB))
        e('s_add_u32 s%d, s%d, s%d' % (S.T4, S.T4, KS))
        e('s_mul_i32 s%d, s%d, 5120' % (S.T4, S.T4))
        e('s_add_u32 s%d, s%d, %d' % (S.T4, S.T4, W2P_OFF))
        e('s_cmp_lt_u32 s%d, 74' % KS)
        e('s_cselect_b32 s%d, s%d, %d' % (S.T4, S.T4, BIGV))
        e('s_add_u32 s%d, s%d, 4096' % (S.T5, S.T4))
        a.wait_vm_tag('gb')
        for tt in range(5):
            for i in range(2):
                e('ds_read_b64_tr_b16 %s, v%d offset:%d' % (vr(G + 4 * tt + 2 * i, 2), T, i * 640 + tt * 32))
        for tt in range(5):
            e('buffer_store_dwordx4 %s, v%d, %s, s%d offen offset:%d sc1' % (vr(G + 4 * tt, 4), V.L16, srd(SRD_WS), S.T4 if tt < 4 else S.T5, (tt & 3) * 1024), 'pbst')
        end = a.snapshot()
        a.label(lj)
        a.merge(snap, end)

    def phase0(self):
        a, e, o = self.a, self.e, self.o
        L = V.LANE
        SCR, T, WPS, KS, O, BSC = self.SCR, self.T, self.WPS, self.KS, self.O, self.BSC
        G = V.X
        ONES = V.X + 60
        e('s_cmp_ge_u32 s%d, 3' % S.W)
        e('s_cbranch_scc1 L_ROLEA2')
        snap = a.snapshot()
        if not o.bearly:
            self.b_dma()
        e('s_branch L_JOIN0')
        endB = a.snapshot()
        a.restore(snap)
        a.label('L_ROLEA2')
        HH, IDX, TILE, BLK = SRD_W2O, S.T5, S.T6, S.T7
        m0, m1, m2 = S.M0, S.M1, S.M2
        for i in range(4):
            e('v_mov_b32 v%d, -1' % (ONES + i))
        e('v_lshl_add_u32 v%d, v%d, 2, v%d' % (T + 2, T + 10, T + 9))
        e('v_and_b32 v%d, 7, v%d' % (T + 3, T + 2))
        e('v_lshrrev_b32 v%d, 3, v%d' % (T + 4, T + 2))
        e('v_lshlrev_b32 v%d, 4, v%d' % (T + 5, T + 3))
        e('v_lshl_add_u32 v%d, v%d, 3, v%d' % (T + 5, T + 4, T + 5))
        e('v_add_u32 v%d, 80, v%d' % (T + 5, T + 5))
        e('v_mul_u32_u24 v%d, 80, v%d' % (T + 6, T + 4))
        e('v_lshlrev_b32 v%d, 3, v%d' % (T + 7, T + 3))
        e('v_sub_u32 v%d, v%d, v%d' % (T + 7, T + 7, T + 6))
        e('v_add_u32 v%d, 80, v%d' % (T + 7, T + 7))
        e('v_cmp_le_u32 vcc, 5, v%d' % (T + 3))
        e('v_cndmask_b32_e32 v%d, v%d, v%d, vcc' % (T + 7, T + 7, T + 5))
        e('v_mul_u32_u24 v%d, 240, v%d' % (T + 5, T + 8))
        e('v_add_u32 v%d, v%d, v%d' % (T + 7, T + 7, T + 5))
        e('v_add_u32 v%d, s%d, v%d' % (T + 7, S.W2K, T + 7))
        e('v_add_u32 v%d, %d, v%d' % (T + 7, SCR - 3 * 2048, T + 7))
        e('s_mul_i32 s%d, s%d, 6' % (IDX, HH))
        e('s_sub_u32 s%d, s%d, s%d' % (IDX, S.R, IDX))
        e('s_cmp_ge_u32 s%d, 3' % IDX)
        e('s_cselect_b32 s%d, 1, 0' % TILE)
        e('s_mul_i32 s%d, s%d, 3' % (BLK, TILE))
        e('s_sub_u32 s%d, s%d, s%d' % (BLK, IDX, BLK))
        e('s_cmp_eq_u32 s%d, 1' % BLK)
        self.csel(m0, '0xaaaaaaaa', '0x55555555')
        e('s_cmp_eq_u32 s%d, 0' % BLK)
        self.csel(m1, '0x55555555', '0xaaaaaaaa')
        e('s_cmp_eq_u32 s%d, 1' % TILE)
        e('s_cselect_b32 s%d, 0x3333, -1' % m2)
        e('s_cselect_b32 s%d, 0, 8' % (m2 + 1))
        e('s_cselect_b32 s%d, 32, 0' % TILE)
        e('s_and_b32 s%d, s%d, s%d' % (m0, m0, m2))
        e('s_and_b32 s%d, s%d, s%d' % (m1, m1, m2))
        e('s_cmp_ge_u32 s%d, 2' % BLK)
        e('s_cselect_b32 s%d, 0, s%d' % (m0 + 1, m0))
        e('s_cselect_b32 s%d, 0, s%d' % (m1 + 1, m1))
        e('s_cselect_b32 s%d, 640, 0' % IDX)
        self.csel(BLK, 640, 320)
        e('s_add_u32 s%d, s%d, s%d' % (IDX, IDX, TILE))
        e('s_add_u32 s%d, s%d, s%d' % (BLK, BLK, TILE))
        e('v_bfe_u32 v%d, v%d, 4, 1' % (T + 2, L))
        e('v_bfe_u32 v%d, v%d, 1, 1' % (T + 3, L))
        e('v_lshl_add_u32 v%d, v%d, 1, v%d' % (T + 2, T + 2, T + 3))
        e('v_mul_u32_u24 v%d, s%d, v%d' % (T + 2, m2 + 1, T + 2))
        e('v_lshrrev_b32 v%d, 5, v%d' % (T + 3, L))
        e('v_lshl_add_u32 v%d, v%d, 2, v%d' % (T + 3, T + 3, T + 8))
        e('v_mul_u32_u24 v%d, 40, v%d' % (T + 3, T + 3))
        e('v_add_u32 v%d, v%d, v%d' % (T + 2, T + 2, T + 3))
        e('v_add_u32 v%d, s%d, v%d' % (T + 3, IDX, T + 2))
        e('v_add_u32 v%d, s%d, v%d' % (T + 4, BLK, T + 2))
        e('v_mov_b32 v%d, 800' % (T + 2))
        e('v_cndmask_b32_e64 v%d, v%d, v%d, %s' % (T + 3, T + 2, T + 3, sr(m0, 2)))
        e('v_cndmask_b32_e64 v%d, v%d, v%d, %s' % (T + 4, T + 2, T + 4, sr(m1, 2)))
        e('v_add_u32 v%d, %d, v%d' % (T + 3, WPS, T + 3))
        e('v_add_u32 v%d, %d, v%d' % (T + 4, WPS, T + 4))
        e('v_and_b32 v%d, 31, v%d' % (T, L))
        e('v_lshlrev_b32 v%d, 4, v%d' % (T, T))
        e('v_lshrrev_b32 v%d, 5, v%d' % (T + 1, L))
        e('v_lshl_add_u32 v%d, v%d, 10, v%d' % (T, T + 1, T))
        e('s_mul_i32 s%d, s%d, 163840' % (m2, S.C))
        e('s_lshr_b32 s%d, s%d, 1' % (m2 + 1, O))
        e('s_lshl_b32 s%d, s%d, 12' % (m2 + 1, m2 + 1))
        e('s_add_u32 s%d, s%d, s%d' % (m2, m2, m2 + 1))
        e('s_and_b32 s%d, s%d, 1' % (m2 + 1, O))
        e('s_lshl_b32 s%d, s%d, 9' % (m2 + 1, m2 + 1))
        e('s_add_u32 s%d, s%d, s%d' % (m2, m2, m2 + 1))
        e('s_add_u32 s%d, s%d, %d' % (m2, m2, WQ_OFF))
        e('s_mul_i32 s%d, s%d, 12' % (m2 + 1, S.C))
        e('s_add_u32 s%d, s%d, s%d' % (m2 + 1, m2 + 1, S.R))
        e('s_lshl_b32 s%d, s%d, 10' % (m2 + 1, m2 + 1))
        e('s_add_u32 s%d, s%d, %d' % (m2 + 1, m2 + 1, WPHI_OFF))
        e('s_cmp_eq_u32 s%d, 3' % S.W)
        e('s_cselect_b32 s%d, s%d, %d' % (m2 + 1, m2 + 1, BIGV))
        e('s_cmp_lt_u32 s%d, 12' % S.R)
        e('s_cselect_b32 s%d, s%d, %d' % (m2 + 1, m2 + 1, BIGV))
        e('s_lshl_b32 s%d, s%d, 4' % (O, S.C))
        e('s_add_u32 s%d, s%d, s%d' % (O, O, S.R))
        e('s_mul_i32 s%d, s%d, %d' % (O, O, KVP_STRIDE))
        e('s_add_u32 s%d, s%d, %d' % (O, O, KVP_OFF - 192 * 16))
        e('v_lshlrev_b32 v%d, 4, v0' % (T + 1))
        e('v_cmp_gt_u32 vcc, %d, v0' % (192 + 224))
        e('v_cndmask_b32_e64 v%d, %s, v%d, vcc' % (T + 1, BIG, T + 1))
        a.wait_vm_tag('g0')
        for hh in range(2):
            for i in range(2):
                e('ds_read_b64_tr_b16 %s, v%d offset:%d' % (vr(G + 4 * hh + 2 * i, 2), T + 7, i * 960 + hh * 40))
        e('ds_read_b64_tr_b16 %s, v%d' % (vr(G + 8, 2), T + 3))
        e('ds_read_b64_tr_b16 %s, v%d' % (vr(G + 10, 2), T + 4))
        e('v_cmp_eq_u32 vcc, 60, v%d' % L)
        e('v_cmp_lt_u32 %s, 60, v%d' % (sr(m0, 2), L))
        for i in range(4):
            e('v_cndmask_b32_e64 v%d, 0, v%d, vcc' % (G + 16 + i, G + 16 + i))
        e('s_or_b64 vcc, vcc, %s' % sr(m0, 2))
        for hh in range(2):
            for i in range(4):
                e('v_cndmask_b32_e32 v%d, v%d, v%d, vcc' % (G + 4 * hh + i, G + 4 * hh + i, G + 16 + i))
            e('buffer_store_dwordx4 %s, v%d, %s, s%d offen offset:%d sc1' % (vr(G + 4 * hh, 4), T, srd(SRD_WS), m2, hh * 2048), 'p0st')
        e('buffer_store_dwordx4 %s, v%d, %s, s%d offen sc1' % (vr(G + 8, 4), V.L16, srd(SRD_WS), m2 + 1), 'p0st')
        e('buffer_store_dwordx4 %s, v%d, %s, s%d offen sc1' % (vr(ONES, 4), T + 1, srd(SRD_WS), O), 'p0st')
        endA = a.snapshot()
        a.label('L_JOIN0')
        a.merge(endA, endB)
        for u in range(o.nfirst, o.npre):
            self.run(self.load_xw(u))
        t0, t1 = S.T0, S.T1
        if o.codepf:
            e('s_getpc_b64 %s' % sr(SRD_CODE, 2))
            a.label('L_PC')
            e('s_mov_b32 s%d, L_CODE_END-L_PC' % (SRD_CODE + 2))
            e('s_mov_b32 s%d, 0x00020000' % (SRD_CODE + 3))
            e('s_lshr_b32 s%d, s2, 3' % t0)
            e('s_lshl_b32 s%d, s%d, 11' % (t0, t0))
            e('s_cmp_eq_u32 s%d, 7' % S.W)
            e('s_cselect_b32 s%d, s%d, s%d' % (t0, t0, BIGS))
            e('v_and_b32 v4, 15, v%d' % L)
            e('v_lshlrev_b32 v4, 7, v4')
            e('v_lshrrev_b32 v5, 4, v%d' % L)
            e('v_lshl_add_u32 v4, v5, 16, v4')
            e('buffer_load_dword v%d, v4, %s, s%d offen' % (V.HT + 11, srd(SRD_CODE), t0), 'pf')
        e('s_mul_i32 s%d, s%d, 163840' % (t0, S.C))
        e('s_lshl_b32 s%d, s%d, 14' % (t1, S.QST))
        e('s_add_u32 s%d, s%d, s%d' % (t0, t0, t1))
        e('s_add_u32 s%d, s%d, s%d' % (S.QS, t0, S.W2K))
        e('s_add_u32 s%d, s%d, %d' % (S.QS, S.QS, WQ_OFF))
        e('v_readfirstlane_b32 s%d, v%d' % (S.TAG, V.M6))
        e('s_add_u32 s%d, s%d, 1' % (S.TAG, S.TAG))

    def flag_store(self, soff, tag, vt, wave0=False):
        e = self.e
        for i in range(4):
            e('v_mov_b32 v%d, s%d' % (vt + i, S.TAG))
        e('v_cmp_gt_u32 vcc, 8, v%d' % (0 if wave0 else V.LANE))
        e('v_cndmask_b32_e64 v%d, %s, v%d, vcc' % (vt + 4, BIG, V.L16))
        e('buffer_store_dwordx4 %s, v%d, %s, s%d offen sc1' % (vr(vt, 4), vt + 4, srd(SRD_WS), soff), tag)

    def wg_flag_store(self, off, hi, lo, sh, vt, tag):
        e = self.e
        e('s_lshl_b32 s%d, s%d, %d' % (S.T0, hi, sh))
        e('s_add_u32 s%d, s%d, s%d' % (S.T0, S.T0, lo))
        e('s_lshl_b32 s%d, s%d, 7' % (S.T0, S.T0))
        e('s_add_u32 s%d, s%d, %d' % (S.T0, S.T0, off))
        self.flag_store(S.T0, tag, vt, wave0=True)

    def poll_issue(self, vd, va, sp, off, hi, nl, wave, tag):
        a, e = self.a, self.e
        ld = a.newlabel('L_PI')
        e('s_mul_i32 s%d, s%d, %d' % (sp, hi, nl * 128))
        e('s_add_u32 s%d, s%d, %d' % (sp, sp, off))
        e('v_and_b32 v%d, %d, v%d' % (va, nl - 1, V.LANE))
        e('v_lshlrev_b32 v%d, 7, v%d' % (va, va))
        e('s_cmp_lg_u32 s%d, %d' % (S.W, wave))
        e('s_cbranch_scc1 %s' % ld)
        snap = a.snapshot()
        e('buffer_load_dword v%d, v%d, %s, s%d offen sc1' % (vd, va, srd(SRD_WS), sp), tag)
        end = a.snapshot()
        a.label(ld)
        a.merge(snap, end)

    def poll_check(self, vd, va, sp, wave, maxit=4000):
        a, e = self.a, self.e
        lo, ld = a.newlabel('L_PL'), a.newlabel('L_PD')
        e('s_cmp_lg_u32 s%d, %d' % (S.W, wave))
        e('s_cbranch_scc1 %s' % ld)
        snap = a.snapshot()
        e('v_cmp_ne_u32 vcc, s%d, v%d' % (S.TAG, vd))
        e('s_mov_b32 s%d, %d' % (S.CNT, maxit))
        e('s_cbranch_vccz %s' % ld)
        snap2 = a.snapshot()
        a.label(lo)
        e('s_sleep %d' % self.o.psleep)
        e('buffer_load_dword v%d, v%d, %s, s%d offen sc1' % (vd, va, srd(SRD_WS), sp), 'pl')
        a.wait_vm(0)
        e('s_sub_u32 s%d, s%d, 1' % (S.CNT, S.CNT))
        e('s_cmp_eq_u32 s%d, 0' % S.CNT)
        e('s_cbranch_scc1 %s' % ld)
        e('v_cmp_ne_u32 vcc, s%d, v%d' % (S.TAG, vd))
        e('s_cbranch_vccnz %s' % lo)
        end = a.snapshot()
        a.label(ld)
        a.merge(snap, snap2)
        a.merge(a.snapshot(), end)

    def hq_setup(self):
        e = self.e
        L = V.LANE
        T = V.HT
        e('v_and_b32 v%d, 31, v%d' % (T, L))
        e('s_lshl_b32 s%d, s%d, 12' % (S.T0, S.PT))
        e('v_lshlrev_b32 v%d, 7, v%d' % (T + 1, T))
        e('v_add_u32 v%d, s%d, v%d' % (T + 1, S.T0, T + 1))
        e('v_bfe_u32 v%d, v%d, 1, 3' % (T + 2, L))
        e('v_lshrrev_b32 v%d, 5, v%d' % (T + 3, L))
        e('v_xor_b32 v%d, v%d, v%d' % (T + 2, T + 2, T + 3))
        e('v_lshl_add_u32 v%d, v%d, 4, v%d' % (V.XR, T + 2, T + 1))
        for kk in range(1, 4):
            e('v_xor_b32 v%d, %d, v%d' % (V.XR + kk, kk * 32, V.XR))
        for win in (1, 2):
            for kk in range(4):
                e('v_add_u32 v%d, %d, v%d' % (V.XR + 4 * win + kk, win * 65536, V.XR + kk))
        e('v_lshlrev_b32 v%d, 11, v%d' % (T, T + 3))
        e('v_bfe_u32 v%d, v%d, 2, 2' % (T + 1, L))
        e('v_lshl_add_u32 v%d, v%d, 6, v%d' % (T, T + 1, T))
        e('v_bfe_u32 v%d, v%d, 4, 1' % (T + 1, L))
        e('v_lshl_add_u32 v%d, v%d, 5, v%d' % (T, T + 1, T))
        e('v_and_b32 v%d, 1, v%d' % (T + 1, L))
        e('v_lshl_add_u32 v%d, v%d, 4, v%d' % (T, T + 1, T))
        e('v_bfe_u32 v%d, v%d, 1, 1' % (T + 1, L))
        e('v_lshl_add_u32 v%d, v%d, 3, v%d' % (T, T + 1, T))
        e('s_lshl_b32 s%d, s%d, 9' % (S.T0, S.FH))
        e('v_add_u32 v%d, s%d, v%d' % (V.TR, S.T0, T))
        e('v_add_u32 v%d, %d, v%d' % (V.TR + 1, 65536, V.TR))
        e('v_add_u32 v%d, %d, v%d' % (V.TR + 2, 131072, V.TR))
        e('s_lshl_b32 s%d, s%d, 11' % (S.T0, S.FH))
        e('v_add_u32 v%d, s%d, v%d' % (V.QR, S.T0, V.L16))
        e('v_add_u32 v%d, %d, v%d' % (V.QR + 1, 65536, V.QR))
        e('v_add_u32 v%d, %d, v%d' % (V.QR + 2, 131072, V.QR))
        e('s_mov_b32 s%d, 0x%08x' % (S.NL2E, f2u(-LOG2E)))
        e('s_mov_b32 s%d, 0x%08x' % (S.NL2E + 1, f2u(-LOG2E)))
        e('s_mov_b32 s%d, 1.0' % S.ONE2)
        e('s_mov_b32 s%d, 1.0' % (S.ONE2 + 1))

    def act_base(self, sd, vd, vt):
        e = self.e
        L = V.LANE
        e('s_lshl_b32 s%d, s%d, 2' % (sd, S.R))
        e('s_add_u32 s%d, s%d, s%d' % (sd, sd, S.PT))
        e('s_mul_i32 s%d, s%d, %d' % (sd, sd, 2 * ACT_PT))
        e('s_add_u32 s%d, s%d, %d' % (sd, sd, ACT_OFF))
        e('v_bfe_u32 v%d, v%d, 4, 1' % (vd, L))
        e('v_mul_u32_u24 v%d, %d, v%d' % (vd, ACT_PT, vd))
        e('v_lshrrev_b32 v%d, 5, v%d' % (vt, L))
        e('v_lshl_add_u32 v%d, v%d, 8, v%d' % (vd, vt, vd))
        e('v_and_b32 v%d, 15, v%d' % (vt, L))
        e('v_lshl_add_u32 v%d, v%d, 4, v%d' % (vd, vt, vd))

    def resets(self):
        e = self.e
        T = V.HT
        self.act_base(S.T0, T, T + 1)
        for i in range(4):
            e('v_mov_b32 v%d, -1' % (T + 4 + i))
        e('s_mul_i32 s%d, s%d, 1280' % (S.T1, S.C))
        e('s_add_u32 s%d, s%d, s%d' % (S.T0, S.T0, S.T1))
        e('s_add_u32 s%d, s%d, %d' % (S.T0, S.T0, 54 * 1024))
        e('s_lshl_b32 s%d, s%d, 9' % (S.T1, S.FH))
        e('s_add_u32 s%d, s%d, s%d' % (S.T1, S.T1, S.T0))
        e('buffer_store_dwordx4 %s, v%d, %s, s%d offen sc1' % (vr(T + 4, 4), T, srd(SRD_WS), S.T1), 'rst')
        e('v_cmp_gt_u32 vcc, 32, v%d' % V.LANE)
        e('v_cndmask_b32_e64 v%d, %s, v%d, vcc' % (T + 1, BIG, T))
        e('s_cmp_eq_u32 s%d, 0' % S.FH)
        e('s_cselect_b32 s%d, s%d, s%d' % (S.T0, S.T0, BIGS))
        e('buffer_store_dwordx4 %s, v%d, %s, s%d offen offset:1024 sc1' % (vr(T + 4, 4), T + 1, srd(SRD_WS), S.T0), 'rst')
        self.g_addr(S.T0, T + 2)
        e('buffer_store_dwordx4 %s, v%d, %s, s%d offen sc1' % (vr(T + 4, 4), T + 2, srd(SRD_WS), S.T0), 'rst')

    def g_addr(self, sd, vd):
        e = self.e
        e('s_lshl_b32 s%d, s%d, 2' % (sd, S.R))
        e('s_add_u32 s%d, s%d, s%d' % (sd, sd, S.PT))
        e('s_lshl_b32 s%d, s%d, 7' % (sd, sd))
        e('s_add_u32 s%d, s%d, %d' % (sd, sd, G_OFF))
        e('s_or_b32 s%d, s%d, s%d' % (S.T7, S.C, S.FH))
        e('s_cmp_eq_u32 s%d, 0' % S.T7)
        e('s_cselect_b32 s%d, s%d, s%d' % (sd, sd, BIGS))
        if vd is not None:
            e('v_cmp_gt_u32 vcc, 8, v%d' % V.LANE)
            e('v_cndmask_b32_e64 v%d, %s, v%d, vcc' % (vd, BIG, V.L16))

    def h_epilogue(self):
        F = []
        T = V.X
        AV, AT = V.M6, V.M7
        HS = S.T6
        F.append(lambda: self.act_base(HS, AV, AT))

        def soff():
            e = self.e
            e('s_lshl_b32 s%d, s%d, 1' % (S.T7, S.FH))
            e('s_add_u32 s%d, s%d, s%d' % (S.T7, S.T7, S.HK0))
            e('s_lshl_b32 s%d, s%d, 10' % (S.T7, S.T7))
            e('s_add_u32 s%d, s%d, s%d' % (HS, HS, S.T7))
            e('s_cmp_ge_u32 s%d, 11' % S.C)
            e('s_cselect_b32 s%d, s%d, 0' % (S.T7, S.FH))
            e('s_cmp_eq_u32 s%d, 0' % S.T7)
            e('s_cselect_b32 s%d, s%d, s%d' % (HS, HS, BIGS))
        F.append(soff)
        for gq in range(4):
            A = V.ACCH + 8 * gq
            tp = T + 8 * (gq & 1)
            for j in range(8):
                F.append('v_mul_f32 v%d, s%d, v%d' % (tp + j, S.NL2E, A + j))
            for j in range(8):
                F.append('v_exp_f32 v%d, v%d' % (tp + j, tp + j))
                if j >= 2:
                    F.append('v_add_f32 v%d, 1.0, v%d' % (tp + j - 2, tp + j - 2))
            for j in range(8):
                if j < 2:
                    F.append('v_add_f32 v%d, 1.0, v%d' % (tp + 6 + j, tp + 6 + j))
                F.append('v_rcp_f32 v%d, v%d' % (tp + j, tp + j))
                if j >= 2:
                    F.append('v_mul_f32 v%d, v%d, v%d' % (tp + j - 2, tp + j - 2, A + j - 2))
            for j in range(6, 8):
                F.append('v_mul_f32 v%d, v%d, v%d' % (tp + j, tp + j, A + j))
            for j in range(4):
                F.append('v_cvt_pk_bf16_f32 v%d, v%d, v%d' % (A + j, tp + 2 * j, tp + 2 * j + 1))
            F.append(('buffer_store_dwordx4 %s, v%d, %s, s%d offen offset:%d sc1' % (vr(A, 4), AV, srd(SRD_WS), HS, (gq >> 1) * 1024 + (gq & 1) * 512), 'hst'))
        return F

    def h_flag(self, vt):
        a, e = self.a, self.e
        e('s_lshl_b32 s%d, s%d, 2' % (S.T0, S.R))
        e('s_add_u32 s%d, s%d, s%d' % (S.T0, S.T0, S.PT))
        e('s_lshl_b32 s%d, s%d, 4' % (S.T0, S.T0))
        e('s_add_u32 s%d, s%d, s%d' % (S.T0, S.T0, S.C))
        e('s_lshl_b32 s%d, s%d, 1' % (S.T0, S.T0))
        e('s_add_u32 s%d, s%d, s%d' % (S.T0, S.T0, S.FH))
        e('s_lshl_b32 s%d, s%d, 7' % (S.T0, S.T0))
        e('s_add_u32 s%d, s%d, %d' % (S.T0, S.T0, HF_OFF))
        a.wait_vm_tag('hst', 'rst')
        self.flag_store(S.T0, 'hf', vt)

    def emit_fill(self, F, n):
        for _ in range(n):
            if not F:
                return
            x = F.pop(0)
            if callable(x):
                x()
            elif isinstance(x, tuple):
                self.e(x[0], x[1])
            else:
                self.e(x)

    def rd(self, i):
        e = self.e
        if 'r' in self.o.dbg:
            return
        U, kk = i >> 2, i & 3
        A = V.AS + 8 * (i % 3)
        if U < 10:
            sl = (2 * U) % 10
            e('ds_read_b128 %s, v%d offset:%d' % (vr(V.X + 16 * U + 4 * kk, 4), V.XR + 4 * (sl >> 2) + kk, (sl & 3) * 16384))
            sl += 1
            for t in range(2):
                for ii in range(2):
                    e('ds_read_b64_tr_b16 %s, v%d offset:%d' % (vr(A + 4 * t + 2 * ii, 2), V.TR + (sl >> 2), (sl & 3) * 16384 + kk * 4096 + ii * 1024 + t * 256))
        else:
            sl = U - 10
            for t in range(2):
                e('ds_read_b128 %s, v%d offset:%d' % (vr(A + 4 * t, 4), V.QR + (sl >> 2), (sl & 3) * 16384 + kk * 4096 + t * 1024))

    def gap(self, F, D, nd):
        for _ in range(nd):
            if D:
                D.pop(0)()
        budget = self.o.vbud
        while F and budget > 0:
            x = F[0]
            if callable(x):
                cost = 8
            else:
                t = x[0] if isinstance(x, tuple) else x
                cost = 8 if t.startswith(('v_exp', 'v_rcp', 'buffer', 'ds_')) else 4
            if cost > budget:
                break
            budget -= cost
            self.emit_fill(F, 1)

    def mm(self, i, F=None, D=None, nd=(0, 0)):
        U, kk = i >> 2, i & 3
        A = V.AS + 8 * (i % 3)
        acc = V.ACCH if U < 10 else V.ACCQ
        xb = V.X + 16 * (U % 10) + 4 * kk
        for t in range(2):
            c = '0' if i in (0, 40) else vr(acc + 16 * t, 16)
            if 'm' not in self.o.dbg:
                self.e('v_mfma_f32_32x32x16_bf16 %s, %s, %s, %s' % (vr(acc + 16 * t, 16), vr(A + 4 * t, 4), vr(xb, 4), c))
            if F is not None:
                self.gap(F, D, nd[t])

    def hq_pass(self):
        a, e, o = self.a, self.e, self.o
        pre = {u: [] for u in range(21)}
        post = {u: [] for u in range(21)}
        dm = {u: [] for u in range(21)}
        waits = {u: (['x%d' % u, 'w%d' % u] if u < 10 else ['q%d' % (u - 10)]) for u in range(20)}
        waits[20] = []
        pre[o.bu + 1].append(self.b_process)
        waits[o.afu].append('p0st')
        post[o.afu].append(lambda: self.wg_flag_store(AF_OFF, S.C, S.R, 4, V.HT, 'af'))
        waits[o.bfu].append('pbst')
        post[o.bfu].append(lambda: self.wg_flag_store(BF_OFF, S.CB, S.RB, 5, V.HT, 'bf'))
        post[o.apu].insert(0, lambda: self.poll_issue(V.M7, V.M6, S.PS, AF_OFF, S.C, 16, 0, 'pa'))
        pre[6].append(lambda: self.poll_check(V.M7, V.M6, S.PS, 0))
        for u in range(o.npre, 5):
            dm[0] += self.load_xw(u)
        dm[o.bu + 1] += self.load_w(9, 'w4', S.WS4)
        for u in range(1, 6):
            dm[u] += self.load_xw(u + 4)
        for u in range(6, 11):
            dm[u] += self.load_q(2 * (u - 6)) + self.load_q(2 * (u - 6) + 1)
        post[o.rstu].append(self.resets)
        self.more_events(pre, post, waits, dm)
        F = []
        D = []
        fills = self.fills()
        for U in range(21):
            if U > 0:
                a.wait_lg(0)
                self.mm(4 * U - 2, F, D, (99, 0))
            assert not D
            for x in pre[U]:
                x()
            if waits[U]:
                a.wait_vm_tag(*waits[U])
            if 'b' not in o.dbg:
                a.barrier()
            for x in post[U]:
                x()
            if U == 20:
                self.mm(79)
                break
            D = list(dm[U])
            npos = 7
            per = [len(D) // npos + (1 if k < len(D) % npos else 0) for k in range(npos)] if len(D) > 4 else None
            if per is None:
                per = [0] * npos
                for k in range(len(D)):
                    per[o.dpos[k]] += 1
            for kk in range(4):
                i = 4 * U + kk
                if i in fills:
                    F += fills[i]
                self.rd(i)
                if i in (70, 71):
                    for j in range(3 * (i - 70), 3 * (i - 69)):
                        e('ds_read_b128 %s, v0 offset:%d' % (vr(V.WPH + 4 * j, 4), 1024 * j))
                if kk == 0:
                    for _ in range(per[0]):
                        D.pop(0)()
                    if U > 0:
                        self.mm(i - 1, F, D, per[1:3])
                    else:
                        self.gap([], D, per[1] + per[2])
                elif kk >= 2:
                    self.mm(i - 2, F, D, per[2 * kk - 1:2 * kk + 1])
            if True:
                self.stamp('u%d' % U)
        assert not F, len(F)

    def fills(self):
        o = self.o
        f = {}
        f[46] = self.h_epilogue()
        f[o.hfstep] = [lambda: self.h_flag(V.X + 16)]
        return f

    def p2_setup(self):
        e = self.e
        e('s_mul_i32 s%d, s%d, 74' % (S.WPS, S.CB))
        e('s_add_u32 s%d, s%d, s%d' % (S.WPS, S.WPS, S.W))
        e('s_mul_i32 s%d, s%d, 5120' % (S.WPS, S.WPS))
        e('s_add_u32 s%d, s%d, %d' % (S.WPS, S.WPS, W2P_OFF))
        e('s_mul_i32 s%d, s%d, %d' % (S.APS, S.RB, 4 * ACT_PT))
        e('s_lshl_b32 s%d, s%d, 10' % (S.D0, S.W))
        e('s_add_u32 s%d, s%d, s%d' % (S.APS, S.APS, S.D0))
        e('s_add_u32 s%d, s%d, %d' % (S.APS, S.APS, ACT_OFF))
        e('s_mul_i32 s%d, s%d, 5120' % (S.W5K, S.W))
        e('s_mul_i32 s%d, s%d, 6144' % (S.D0, S.FH))
        e('s_add_u32 s%d, s%d, %d' % (S.D0, S.D0, 5 * 16384))
        e('v_add_u32 v0, s%d, v%d' % (S.D0, V.L16))
        e('s_mul_i32 s%d, s%d, 12288' % (S.WPHS, S.C))
        e('s_add_u32 s%d, s%d, s%d' % (S.WPHS, S.WPHS, S.W2K))
        e('s_add_u32 s%d, s%d, %d' % (S.WPHS, S.WPHS, WPHI_OFF))
        e('s_cmp_lt_u32 s%d, 6' % S.W)
        e('s_cselect_b32 s%d, s%d, s%d' % (S.WPHS, S.WPHS, BIGS))

    def p2_soff(self, i, sd, base, unit):
        e = self.e
        if i < 6:
            e('s_add_u32 s%d, s%d, %d' % (sd, base, 8 * i * unit))
        elif i == 6:
            e('s_add_u32 s%d, s%d, %d' % (sd, base, 48 * unit))
            e('s_cmp_lt_u32 s%d, 6' % S.W)
            e('s_cselect_b32 s%d, s%d, s%d' % (sd, sd, BIGS))
        else:
            e('s_mul_i32 s%d, s%d, %d' % (sd, S.W, -2 * unit))
            e('s_add_u32 s%d, s%d, s%d' % (sd, sd, base))
            e('s_add_u32 s%d, s%d, %d' % (sd, sd, (61 + 8 * (i - 7)) * unit))
            if i == 9:
                e('s_cmp_ge_u32 s%d, 4' % S.W)
                e('s_cselect_b32 s%d, s%d, s%d' % (sd, sd, BIGS))

    def load_wp(self, i):
        so = S.WRS + (i & 1) * 2
        L = []
        for T in range(5):
            pre = None
            if T == 0:
                def pre(i=i, so=so):
                    self.p2_soff(i, so, S.WPS, 5120)
                    self.e('s_add_u32 s%d, s%d, 4096' % (so + 1, so))
            L.append(self.dma(S.W5K, (i % 3) * 40960 + (4096 if T == 4 else 0), V.L16, SRD_WS, so + (1 if T == 4 else 0), (T & 3) * 1024, 'W%d' % i, sc1=True, pre=pre))
        return L

    def load_act(self, i):
        so = S.ARS + (i & 1)
        L = []
        for tt in range(4):
            def f(tt=tt, i=i, so=so):
                if tt == 0:
                    self.p2_soff(i, so, S.APS, 1024)
                self.e('buffer_load_dwordx4 %s, v%d, %s, s%d offen sc1' % (vr(V.ACTB + 16 * (i & 3) + 4 * tt, 4), V.AV[tt], srd(SRD_WS), so), 'A%d' % i)
            L.append(f)
        return L

    def more_events(self, pre, post, waits, dm):
        o = self.o
        post[7].append(self.p2_setup)
        post[8].insert(0, lambda: self.poll_issue(V.HT + 9, V.HT + 8, S.PS, BF_OFF, S.CB, 32, 0, 'pb'))
        pre[10].append(lambda: self.poll_check(V.HT + 9, V.HT + 8, S.PS, 0))
        dm[13] += self.load_wp(0)
        dm[15] += self.load_wp(1)
        dm[16] += [self.dma(S.W2K, 5 * 16384, V.L16, SRD_WS, S.WPHS, 0, 'wph', sc1=True),
                   self.dma(S.W2K, 5 * 16384, V.L16, SRD_WS, S.WPHS, 1024, 'wph', sc1=True)]
        waits[17].append('wph')
        dm[18] += self.load_wp(2)
        post[o.hpu].insert(0, lambda: self.poll_issue(V.M7, V.M6, S.PS, HF_OFF, S.RB, 64, 0, 'ph'))
        pre[20].append(lambda: self.poll_check(V.M7, V.M6, S.PS, 0))

    def q_epilogue(self):
        a, e, o = self.a, self.e, self.o
        L = V.LANE
        AQ = V.ACCQ
        B0, B2, B13, R2 = 8, 12, 16, 20
        D0, D1 = 32, 48
        EP, EM, PH = 64, 200, 44
        SCR2 = 131072
        L2E, NL2E = S.L2E, S.NL2E
        T = 24
        e('s_mov_b32 s%d, 0x%08x' % (L2E, f2u(LOG2E)))
        for tt in range(1, 4):
            e('v_add_u32 v%d, %d, v%d' % (V.AV[tt], tt * ACT_PT, V.L16))
        D = []
        for i in range(o.nact0):
            D += self.load_act(i)
        e('s_lshl_b32 s%d, s%d, 14' % (S.T0, S.FH))
        e('s_lshl_b32 s%d, s%d, 12' % (S.T1, S.PT))
        e('s_add_u32 s%d, s%d, s%d' % (S.T0, S.T0, S.T1))
        e('s_add_u32 s%d, s%d, %d' % (S.T0, S.T0, SCR2))
        e('v_bfe_u32 v%d, v%d, 2, 3' % (T, L))
        e('v_lshlrev_b32 v%d, 9, v%d' % (T, T))
        e('v_and_b32 v%d, 3, v%d' % (T + 1, L))
        e('v_lshl_add_u32 v%d, v%d, 6, v%d' % (T, T + 1, T))
        e('v_bfe_u32 v%d, v%d, 2, 2' % (T + 1, L))
        e('v_lshrrev_b32 v%d, 5, v%d' % (T + 2, L))
        e('v_xor_b32 v%d, v%d, v%d' % (T + 1, T + 1, T + 2))
        e('v_lshl_add_u32 v%d, v%d, 4, v%d' % (T, T + 1, T))
        e('v_add_u32 v%d, s%d, v%d' % (T, S.T0, T))
        e('v_xor_b32 v%d, 32, v%d' % (T + 1, T))
        e('v_xor_b32 v%d, 16, v%d' % (T + 2, T))
        e('v_xor_b32 v%d, 48, v%d' % (T + 3, T))
        e('s_mov_b32 vcc_lo, 0')
        e('s_mov_b32 vcc_hi, -1')

        def pk(d, s):
            e('v_cvt_pk_bf16_f32 v%d, v%d, v%d' % (d, s, s + 1))
        for j in range(4):
            pk(B0 + j, AQ + 2 * j)
        for j in range(4):
            pk(B2 + j, AQ + 16 + 2 * j)
        WP = V.WPH

        def mf(d, ai, b, first=False):
            e('v_mfma_f32_32x32x16_bf16 %s, %s, %s, %s' % (vr(d, 16), vr(WP + 4 * ai, 4), vr(b, 4), '0' if first else vr(d, 16)))
        mf(D0, 0, B0, True)
        for j in range(2):
            pk(B13 + j, AQ + 8 + 2 * j)
            pk(B13 + 2 + j, AQ + 24 + 2 * j)
        mf(D1, 3, B0, True)
        for j in range(2):
            pk(R2 + j, AQ + 12 + 2 * j)
            pk(R2 + 2 + j, AQ + 28 + 2 * j)
        mf(D0, 1, B2)
        e('v_mul_f32 v%d, s%d, v%d' % (V.G1, NL2E, AQ + 28))
        e('v_mov_b32 v%d, 0x3f80' % (T + 4))
        e('v_cndmask_b32_e32 v%d, v%d, v%d, vcc' % (R2 + 2, R2 + 2, T + 4))
        e('v_cndmask_b32_e64 v%d, v%d, 0, vcc' % (R2 + 3, R2 + 3))
        mf(D1, 4, B2)
        e('v_exp_f32 v%d, v%d' % (V.G1, V.G1))
        e('ds_write_b128 v%d, %s offset:256' % (T, vr(B13, 4)))
        mf(D0, 2, B13)
        e('ds_write_b128 v%d, %s offset:256' % (T + 1, vr(R2, 4)))
        e('v_add_f32 v%d, 1.0, v%d' % (V.G1, V.G1))
        mf(D1, 5, B13)
        e('v_rcp_f32 v%d, v%d' % (V.G1, V.G1))
        self.g_addr(S.T2, None)
        e('v_lshlrev_b32 v%d, 2, v%d' % (T + 5, L))
        e('v_cndmask_b32_e64 v%d, v%d, %s, vcc' % (T + 5, T + 5, BIG))
        e('v_mov_b32 v%d, v%d' % (T + 4, V.G1))
        e('v_permlane32_swap_b32 v%d, v%d' % (T + 4, V.G1))
        e('buffer_store_dword v%d, v%d, %s, s%d offen sc1' % (V.G1, T + 5, srd(SRD_WS), S.T2), 'gst')
        P = [D0 + i for i in range(16)] + [D1 + i for i in range(4)]
        F = []
        MX, MN = T + 4, T + 5
        for op, M in (('max', MX), ('min', MN)):
            F.append('v_%s3_f32 v%d, v%d, v%d, v%d' % (op, M, P[0], P[1], P[2]))
        for i in range(3, 19, 2):
            for op, M in (('max', MX), ('min', MN)):
                F.append('v_%s3_f32 v%d, v%d, v%d, v%d' % (op, M, M, P[i], P[i + 1]))
        for op, M in (('max', MX), ('min', MN)):
            F.append('v_%s_f32 v%d, v%d, v%d' % (op, M, M, P[19]))
        F.append('v_mul_f32 v%d, s%d, v%d' % (MX, NL2E, MX))
        F.append('v_mul_f32 v%d, s%d, v%d' % (MN, L2E, MN))
        for i in range(20):
            F.append('v_fma_f32 v%d, v%d, s%d, v%d' % (EP + i, P[i], L2E, MX))
            F.append('v_fma_f32 v%d, v%d, s%d, v%d' % (EM + i, P[i], NL2E, MN))
            if i >= 1:
                F.append('v_exp_f32 v%d, v%d' % (EP + i - 1, EP + i - 1))
                F.append('v_exp_f32 v%d, v%d' % (EM + i - 1, EM + i - 1))
            if i == 3:
                F.append('v_add_f32 v%d, v%d, v%d' % (T + 6, EP, EP + 1))
                F.append('v_add_f32 v%d, v%d, v%d' % (T + 7, EM, EM + 1))
            elif i > 3:
                F.append('v_add_f32 v%d, v%d, v%d' % (T + 6, T + 6, EP + i - 2))
                F.append('v_add_f32 v%d, v%d, v%d' % (T + 7, T + 7, EM + i - 2))
        F.append('v_exp_f32 v%d, v%d' % (EP + 19, EP + 19))
        F.append('v_exp_f32 v%d, v%d' % (EM + 19, EM + 19))
        for i in (18, 19):
            F.append('v_add_f32 v%d, v%d, v%d' % (T + 6, T + 6, EP + i))
            F.append('v_add_f32 v%d, v%d, v%d' % (T + 7, T + 7, EM + i))
        F.append('v_rcp_f32 v%d, v%d' % (T + 6, T + 6))
        F.append('v_rcp_f32 v%d, v%d' % (T + 7, T + 7))
        E = [EP + i for i in range(20)] + [EM + i for i in range(20)]
        waddr = [(T, 0), (T + 2, 0), (T + 1, 0), (T + 3, 0), (T, 256)]
        for gq in range(5):
            for j in range(8):
                x = E[8 * gq + j]
                F.append('v_mul_f32 v%d, v%d, v%d' % (x, x, T + 6 if 8 * gq + j < 20 else T + 7))
            for j in range(4):
                F.append('v_cvt_pk_bf16_f32 v%d, v%d, v%d' % (PH + 4 * gq + j, E[8 * gq + 2 * j], E[8 * gq + 2 * j + 1]))

            def wr(gq=gq):
                e('s_mov_b32 exec_hi, 0')
                e('ds_write_b128 v%d, %s offset:%d' % (waddr[gq][0], vr(PH + 4 * gq, 4), waddr[gq][1]))
                e('s_mov_b32 exec_hi, -1')
            F.append(wr)
        n = 0
        while F:
            self.emit_fill(F, 1)
            n += 1
            if D and n % o.actgap == 0:
                D.pop(0)()
        self.run(D)
        for j in range(4):
            e('v_permlane32_swap_b32 v%d, v%d' % (PH + j, PH + 4 + j))
            e('v_permlane32_swap_b32 v%d, v%d' % (PH + 8 + j, PH + 12 + j))
            e('v_cndmask_b32_e64 v%d, 0, v%d, vcc' % (PH + 16 + j, PH + 16 + j))
        a.wait_lg(0)
        a.barrier()
        self.stamp('e2')
        lj = a.newlabel('L_KV')
        e('s_cmp_ge_u32 s%d, 4' % S.W)
        e('s_cbranch_scc1 %s' % lj)
        snap = a.snapshot()
        HH, FT = S.T0, S.T1
        e('s_lshr_b32 s%d, s%d, 1' % (HH, S.W))
        e('s_and_b32 s%d, s%d, 1' % (FT, S.W))
        e('s_lshl_b32 s%d, s%d, 14' % (S.T2, HH))
        e('s_add_u32 s%d, s%d, %d' % (S.T2, S.T2, SCR2))
        e('s_lshl_b32 s%d, s%d, 8' % (S.T3, FT))
        e('s_add_u32 s%d, s%d, s%d' % (S.T3, S.T3, S.T2))
        e('v_lshrrev_b32 v%d, 5, v%d' % (T + 4, L))
        e('v_lshlrev_b32 v%d, 10, v%d' % (T + 5, T + 4))
        e('v_bfe_u32 v%d, v%d, 2, 2' % (T + 6, L))
        e('v_lshl_add_u32 v%d, v%d, 6, v%d' % (T + 5, T + 6, T + 5))
        e('v_and_b32 v%d, 1, v%d' % (T + 6, L))
        e('v_lshl_add_u32 v%d, v%d, 3, v%d' % (T + 5, T + 6, T + 5))
        e('v_bfe_u32 v%d, v%d, 4, 1' % (T + 6, L))
        e('v_bfe_u32 v%d, v%d, 1, 1' % (T + 7, L))
        e('v_lshl_add_u32 v%d, v%d, 1, v%d' % (T + 6, T + 6, T + 7))
        e('v_add_u32 v%d, 1, v%d' % (T + 7, T + 6))
        e('v_and_b32 v%d, 3, v%d' % (T + 7, T + 7))
        e('v_lshlrev_b32 v%d, 1, v%d' % (T + 4, T + 4))
        e('v_xor_b32 v%d, v%d, v%d' % (T + 6, T + 6, T + 4))
        e('v_xor_b32 v%d, v%d, v%d' % (T + 7, T + 7, T + 4))
        e('v_lshl_add_u32 v%d, v%d, 4, v%d' % (T + 6, T + 6, T + 5))
        e('v_lshl_add_u32 v%d, v%d, 4, v%d' % (T + 7, T + 7, T + 5))
        e('v_add_u32 v%d, s%d, v%d' % (T, S.T3, T + 6))
        e('v_add_u32 v%d, s%d, v%d' % (T + 2, S.T2, T + 7))
        e('v_xor_b32 v%d, 16, v%d' % (T + 1, T))
        e('v_xor_b32 v%d, 16, v%d' % (T + 3, T + 2))
        KB = [64, 200]
        KD = 96

        def kr(s):
            b = KB[(s >> 2) & 1] + 8 * (s & 3)
            for i in range(2):
                e('ds_read_b64_tr_b16 %s, v%d offset:%d' % (vr(b + 2 * i, 2), T + i, s * 2048 + i * 512))
            for i in range(2):
                e('ds_read_b64_tr_b16 %s, v%d offset:%d' % (vr(b + 4 + 2 * i, 2), T + 2 + i, s * 2048 + i * 512 + 256))
        for s in range(3):
            kr(s)
        e('s_lshl_b32 s%d, s%d, 4' % (S.T2, S.C))
        e('s_add_u32 s%d, s%d, s%d' % (S.T2, S.T2, S.R))
        e('s_mul_i32 s%d, s%d, %d' % (S.T2, S.T2, KVP_STRIDE))
        e('s_mul_i32 s%d, s%d, 1680' % (S.T3, HH))
        e('s_add_u32 s%d, s%d, s%d' % (S.T2, S.T2, S.T3))
        e('s_mul_i32 s%d, s%d, 1344' % (S.T3, FT))
        e('s_add_u32 s%d, s%d, s%d' % (S.T2, S.T2, S.T3))
        e('s_add_u32 s%d, s%d, %d' % (S.T2, S.T2, KVP_OFF))
        e('s_cmp_eq_u32 s%d, 0' % FT)
        e('s_cselect_b32 s%d, s%d, s%d' % (S.T3, S.T2, BIGS))
        e('s_mov_b32 vcc_lo, 0x1fffff')
        e('s_cselect_b32 vcc_hi, 0x1fffff, 0')
        e('v_and_b32 v%d, 31, v%d' % (T + 4, L))
        e('v_lshrrev_b32 v%d, 5, v%d' % (T + 5, L))
        e('v_mul_u32_u24 v%d, 21, v%d' % (T + 5, T + 5))
        e('v_add_lshl_u32 v%d, v%d, v%d, 4' % (T + 4, T + 4, T + 5))
        e('v_cndmask_b32_e64 v%d, %s, v%d, vcc' % (T + 4, BIG, T + 4))
        for s in range(8):
            if s + 3 < 8:
                kr(s + 3)
            b = KB[(s >> 2) & 1] + 8 * (s & 3)
            e('v_mfma_f32_32x32x16_bf16 %s, %s, %s, %s' % (vr(KD, 16), vr(b, 4), vr(b + 4, 4), '0' if s == 0 else vr(KD, 16)))
        KP = 64
        for j in range(8):
            pk(KP + j, KD + 2 * j)
        for h in range(2):
            for j in range(2):
                e('v_permlane32_swap_b32 v%d, v%d' % (KP + 4 * h + j, KP + 4 * h + 2 + j))
            e('buffer_store_dwordx4 %s, v%d, %s, s%d offen offset:%d sc1' % (vr(KP + 4 * h, 4), T + 4, srd(SRD_WS), S.T3 if h else S.T2, 672 * h), 'kvst')
        end = a.snapshot()
        a.label(lj)
        a.merge(snap, end)

    def retry(self, chk, reload, maxit=2000):
        a, e = self.a, self.e
        lo, ld = a.newlabel('L_RL'), a.newlabel('L_RD')
        chk()
        e('s_mov_b32 s%d, %d' % (S.CNT, maxit))
        e('s_cbranch_vccz %s' % ld)
        snap = a.snapshot()
        a.label(lo)
        e('s_sleep %d' % self.o.rsleep)
        reload()
        a.wait_vm(0)
        e('s_sub_u32 s%d, s%d, 1' % (S.CNT, S.CNT))
        e('s_cmp_eq_u32 s%d, 0' % S.CNT)
        e('s_cbranch_scc1 %s' % ld)
        chk()
        e('s_cbranch_vccnz %s' % lo)
        end = a.snapshot()
        a.label(ld)
        a.merge(snap, end)

    def chk_regs(self, regs, t):
        e = self.e
        regs = list(regs)
        if len(regs) == 1:
            e('v_cmp_eq_u32 vcc, -1, v%d' % regs[0])
            return
        if len(regs) % 2 == 0:
            e('v_max_u32 v%d, v%d, v%d' % (t, regs[0], regs[1]))
            regs = regs[2:]
        else:
            e('v_max3_u32 v%d, v%d, v%d, v%d' % (t, regs[0], regs[1], regs[2]))
            regs = regs[3:]
        while regs:
            e('v_max3_u32 v%d, v%d, v%d, v%d' % (t, t, regs[0], regs[1]))
            regs = regs[2:]
        e('v_cmp_eq_u32 vcc, -1, v%d' % t)

    KL, SM, OD = 64, 96, 96
    SAREA = 122880

    def kv_loads(self):
        L = []
        KA = 53

        def first():
            e = self.e
            e('s_lshr_b32 s%d, s%d, 2' % (S.KVS, S.W))
            e('s_lshl_b32 s%d, s%d, 3' % (S.KVS, S.KVS))
            e('s_lshl_b32 s%d, s%d, 4' % (S.D0, S.C))
            e('s_add_u32 s%d, s%d, s%d' % (S.KVS, S.KVS, S.D0))
            e('s_mul_i32 s%d, s%d, %d' % (S.KVS, S.KVS, KVP_STRIDE))
            e('s_add_u32 s%d, s%d, %d' % (S.KVS, S.KVS, KVP_OFF))
            e('s_lshl_b32 s%d, s%d, 10' % (S.D0, S.PT))
            e('v_add_u32 v%d, s%d, v%d' % (KA, S.D0, V.L16))
            e('v_cmp_gt_u32 vcc, %d, v%d' % (3360, KA))
            e('v_cndmask_b32_e64 v%d, %s, v%d, vcc' % (KA, BIG, KA))
        for j in range(8):
            def f(j=j):
                if j == 0:
                    first()
                self.kv_load1(j)
            L.append(f)
        return L

    def kv_load1(self, j):
        e = self.e
        e('s_add_u32 s%d, s%d, %d' % (S.D0, S.KVS, j * KVP_STRIDE))
        e('buffer_load_dwordx4 %s, v53, %s, s%d offen sc1' % (vr(self.KL + 4 * j, 4), srd(SRD_WS), S.D0), 'kvl')

    def o_stage(self):
        a, e, o = self.a, self.e, self.o
        L = V.LANE
        KL, SM, OD = self.KL, self.SM, self.OD
        T = 104
        e('v_bfe_u32 v%d, v%d, 3, 1' % (T, L))
        e('v_and_b32 v%d, 3, v%d' % (T + 1, L))
        e('v_lshl_add_u32 v%d, v%d, 2, v%d' % (T, T, T + 1))
        e('v_and_b32 v%d, 16, v%d' % (T + 1, L))
        e('v_add_u32 v%d, v%d, v%d' % (T, T, T + 1))
        e('v_bfe_u32 v%d, v%d, 2, 1' % (T + 1, L))
        e('v_lshl_add_u32 v%d, v%d, 3, v%d' % (T, T + 1, T))
        e('v_min_u32 v%d, 20, v%d' % (T, T))
        e('s_mul_i32 s%d, s%d, 1680' % (S.T0, S.FH))
        e('s_add_u32 s%d, s%d, %d' % (S.T0, S.T0, self.SAREA))
        e('v_lshlrev_b32 v%d, 4, v%d' % (T, T))
        e('v_add_u32 v%d, s%d, v%d' % (54, S.T0, T))
        e('v_lshrrev_b32 v%d, 5, v%d' % (T + 1, L))
        e('v_mul_u32_u24 v%d, 336, v%d' % (T + 1, T + 1))
        e('v_add_u32 v%d, v%d, v%d' % (55, 54, T + 1))
        e('s_lshl_b32 s%d, s%d, 10' % (S.T0, S.W))
        e('s_add_u32 s%d, s%d, %d' % (S.T0, S.T0, self.SAREA))
        e('v_add_u32 v%d, s%d, v%d' % (T + 1, S.T0, V.L16))
        e('s_mov_b32 s%d, 0x3f80' % S.T1)
        e('s_mov_b32 s%d, 0x3f800000' % S.T2)
        self.retry(lambda: self.chk_regs([KL + 4 * j for j in range(8)], T), lambda: [self.kv_load1(j) for j in range(8)])
        for j in range(8):
            for d in range(4):
                for h in range(2):
                    e('v_dot2_f32_bf16 v%d, v%d, s%d, %s' % (SM + 2 * d + h, KL + 4 * j + d, S.T1 + h, '0' if j == 0 else 'v%d' % (SM + 2 * d + h)))
        for d in range(4):
            e('v_cvt_pk_bf16_f32 v%d, v%d, v%d' % (KL + d, SM + 2 * d, SM + 2 * d + 1))
        e('ds_write_b128 v%d, %s' % (T + 1, vr(KL, 4)))
        a.wait_lg(0)
        a.barrier()
        AF = 64
        for hf in range(2):
            for s in range(3):
                e('ds_read_b128 %s, v%d offset:%d' % (vr(AF + 12 * hf + 4 * s, 4), 55 if s < 2 else 54, hf * 4096 + (672 * s if s < 2 else 1344)))
        self.act_base(S.T0, 88, 89)
        e('s_mul_i32 s%d, s%d, 1280' % (S.T1, S.C))
        e('s_add_u32 s%d, s%d, s%d' % (S.T0, S.T0, S.T1))
        e('s_add_u32 s%d, s%d, %d' % (S.T0, S.T0, 54 * 1024))
        e('s_lshl_b32 s%d, s%d, 9' % (S.T1, S.FH))
        e('s_add_u32 s%d, s%d, s%d' % (S.T1, S.T1, S.T0))
        e('s_lshl_b32 s%d, s%d, 3' % (S.T2, S.FH))
        e('s_add_u32 s%d, s%d, s%d' % (S.T0, S.T0, S.T2))
        e('v_cmp_gt_u32 vcc, 32, v%d' % L)
        e('v_cndmask_b32_e64 v89, %s, v88, vcc' % BIG)
        PQ = [48, 56, 60]
        n = 0
        for hf in range(2):
            for s in range(3):
                e('v_mfma_f32_32x32x16_bf16 %s, %s, %s, %s' % (vr(OD, 16), vr(AF + 12 * hf + 4 * s, 4), vr(PQ[s], 4), '0' if n == 0 else vr(OD, 16)))
                n += 1
        a.wait_lg(0)
        a.barrier()
        e('v_add_f32 v90, 0x%08x, v%d' % (f2u(1e-6), OD + 12))
        e('v_rcp_f32 v90, v90')
        e('v_mul_f32 v90, v90, v%d' % V.G1)
        for j in range(12):
            e('v_mul_f32 v%d, v%d, v90' % (OD + j, OD + j))
        for j in range(6):
            e('v_cvt_pk_bf16_f32 v%d, v%d, v%d' % (AF + j, OD + 2 * j, OD + 2 * j + 1))
        e('buffer_store_dwordx4 %s, v88, %s, s%d offen sc1' % (vr(AF, 4), srd(SRD_WS), S.T1), 'ost')
        e('buffer_store_dwordx2 %s, v89, %s, s%d offen offset:1024 sc1' % (vr(AF + 4, 2), srd(SRD_WS), S.T0), 'ost')

    G4 = 72

    def g_loads(self):
        e = self.e
        e('s_lshl_b32 s%d, s%d, 8' % (S.KVS, S.RB))
        e('s_add_u32 s%d, s%d, %d' % (S.KVS, S.KVS, G_OFF))
        e('v_and_b32 v53, 15, v%d' % V.LANE)
        e('v_lshlrev_b32 v53, 2, v53')
        self.g_load1()

    def g_load1(self):
        for tt in range(4):
            self.e('buffer_load_dword v%d, v53, %s, s%d offen offset:%d sc1' % (self.G4 + tt, srd(SRD_WS), S.KVS, 64 * tt), 'gl')

    def wp_read(self, i):
        L = [lambda: self.a.wait_vm_tag('W%d' % i)]
        for T in range(5):
            L.append('ds_read_b128 %s, v%d offset:%d' % (vr(V.WB + 20 * (i & 1) + 4 * T, 4), V.M7 if i % 3 < 2 else 0, (i % 3 & 1) * 40960 + 1024 * T))
        return L

    def phase2(self):
        a, e, o = self.a, self.e, self.o
        NR = 10
        e('v_add_u32 v%d, s%d, v%d' % (V.M7, S.W5K, V.L16))
        e('v_add_u32 v0, %d, v%d' % (81920, V.M7))
        self.emit_fill(self.wp_read(0), 99)
        issue_act = {}
        for i in range(o.nact0, NR):
            issue_act.setdefault(i - 4 if i < 7 else max(i - o.olag, i - 4), []).append(i)
        for i in range(NR):
            if i >= 7:
                regs = [V.ACTB + 16 * (i & 3) + 4 * tt + d for tt in range(4) for d in (0, 2)]
                self.retry(lambda: self.chk_regs(regs, 76), lambda: self.run(self.load_act(i)))
            F = []
            if i + 3 < NR:
                F += self.load_wp(i + 3)
            if i + 1 < NR:
                F += self.wp_read(i + 1)
            if i == o.kvr:
                F += self.kv_loads()
            if i == o.gr:
                F.append(self.g_loads)
            A = []
            for j in issue_act.get(i, []):
                A.append((j, self.load_act(j)))
            for j, la in A:
                if j - 4 != i:
                    F += la
            for tt in range(4):
                for T in range(5):
                    acc = vr(V.ACC2 + 20 * tt + 4 * T, 4)
                    e('v_mfma_f32_16x16x32_bf16 %s, %s, %s, %s' % (acc, vr(V.WB + 20 * (i & 1) + 4 * T, 4), vr(V.ACTB + 16 * (i & 3) + 4 * tt, 4), '0' if i == 0 else acc))
                    self.emit_fill(F, 1)
                for j, la in A:
                    if j - 4 == i:
                        la[tt]()
            self.emit_fill(F, 99)
            if i == o.ors:
                self.o_stage()
                if o.stop == 'o':
                    return
            if i == 6:
                G4 = self.G4
                self.retry(lambda: self.chk_regs([G4 + tt for tt in range(4)], 76), self.g_load1)
                for tt in range(4):
                    e('v_sub_f32 v%d, 1.0, v%d' % (G4 + tt, G4 + tt))
                for tt in range(4):
                    for j in range(20):
                        e('v_mul_f32 v%d, v%d, v%d' % (V.ACC2 + 20 * tt + j, V.ACC2 + 20 * tt + j, G4 + tt))
            if True:
                self.stamp('r%d' % i)
        L = V.LANE
        T = 64
        e('v_and_b32 v%d, 15, v%d' % (T, L))
        e('v_lshrrev_b32 v%d, 5, v%d' % (T + 1, L))
        e('v_xor_b32 v%d, v%d, v%d' % (T, T, T + 1))
        e('v_lshlrev_b32 v%d, 4, v%d' % (T, T))
        e('v_lshrrev_b32 v%d, 4, v%d' % (T + 1, L))
        e('v_lshl_add_u32 v%d, v%d, 8, v%d' % (T, T + 1, T))
        e('v_add_u32 v%d, s%d, v%d' % (T, S.W5K, T))
        for t in range(1, 5):
            e('v_xor_b32 v%d, %d, v%d' % (T + t, t << 5, T))
        for t in range(5):
            e('v_add_u32 v%d, %d, v%d' % (T + 5 + t, 81920, T + t))
        for tt in range(4):
            for t in range(5):
                e('ds_write_b128 v%d, %s offset:%d' % (T + 5 * (tt >> 1) + t, vr(V.ACC2 + 20 * tt + 4 * t, 4), (tt & 1) * 40960 + t * 1024))
        R = 80
        e('s_lshr_b32 s%d, s%d, 1' % (S.T0, S.W))
        e('s_mul_i32 s%d, s%d, 40960' % (S.T0, S.T0))
        e('s_and_b32 s%d, s%d, 1' % (S.T1, S.W))
        e('s_lshl_b32 s%d, s%d, 3' % (S.T1, S.T1))
        e('s_lshl_b32 s%d, s%d, 3' % (S.T2, S.RB))
        e('s_add_u32 s%d, s%d, s%d' % (S.T2, S.T2, S.W))
        e('s_mul_i32 s%d, s%d, %d' % (S.T2, S.T2, 8 * 1280))
        e('s_mul_i32 s%d, s%d, 160' % (S.T3, S.CB))
        e('s_add_u32 s%d, s%d, s%d' % (S.T2, S.T2, S.T3))
        for p in range(2):
            ix, row, c10, la, ga = R + 8 * p, R + 8 * p + 1, R + 8 * p + 2, R + 8 * p + 3, R + 8 * p + 4
            if p == 0:
                e('v_mov_b32 v%d, v%d' % (ix, L))
            else:
                e('v_and_b32 v%d, 15, v%d' % (ix, L))
                e('v_add_u32 v%d, 64, v%d' % (ix, ix))
            e('v_mul_u32_u24 v%d, 205, v%d' % (row, ix))
            e('v_lshrrev_b32 v%d, 11, v%d' % (row, row))
            e('v_mul_u32_u24 v%d, 10, v%d' % (c10, row))
            e('v_sub_u32 v%d, v%d, v%d' % (c10, ix, c10))
            e('v_mul_u32_u24 v%d, 1280, v%d' % (ga, row))
            e('v_lshl_add_u32 v%d, v%d, 4, v%d' % (ga, c10, ga))
            e('v_add_u32 v%d, s%d, v%d' % (row, S.T1, row))
            e('v_xor_b32 v%d, v%d, v%d' % (row, row, c10))
            e('v_lshlrev_b32 v%d, 9, v%d' % (la, c10))
            e('v_lshl_add_u32 v%d, v%d, 4, v%d' % (la, row, la))
            e('v_add_u32 v%d, s%d, v%d' % (la, S.T0, la))
            if p == 1:
                e('v_cmp_gt_u32 vcc, 16, v%d' % L)
                e('v_cndmask_b32_e64 v%d, %s, v%d, vcc' % (ga, BIG, ga))
        a.wait_lg(0)
        a.barrier()
        self.stamp('red')
        RB_ = [112, 176]
        for p in range(2):
            la = R + 8 * p + 3
            if p == 1:
                e('s_mov_b64 exec, 0xffff')
            for sw in range(8):
                for q in range(2):
                    e('ds_read_b128 %s, v%d offset:%d' % (vr(RB_[p] + 8 * sw + 4 * q, 4), la, sw * 5120 + q * 256))
            if p == 1:
                e('s_mov_b64 exec, -1')
        for p in range(2):
            b = RB_[p]
            for st in (1, 2, 4):
                for sw in range(0, 8, 2 * st):
                    for j in range(8):
                        e('v_add_f32 v%d, v%d, v%d' % (b + 8 * sw + j, b + 8 * sw + j, b + 8 * (sw + st) + j))
            for j in range(4):
                e('v_cvt_pk_bf16_f32 v%d, v%d, v%d' % (b + j, b + 2 * j, b + 2 * j + 1))
            e('buffer_store_dwordx4 %s, v%d, %s, s%d offen' % (vr(b, 4), R + 8 * p + 4, srd(SRD_OUT), S.T2), 'out')

    def epilogue_end(self):
        a, e, o = self.a, self.e, self.o
        if o.stamps:
            self.stamp('end')
            a.wait_lg(0)
            n = self.nstamp
            e('s_lshl_b32 s%d, s2, 3' % S.T0)
            e('s_add_u32 s%d, s%d, s%d' % (S.T0, S.T0, S.W))
            e('s_mul_i32 s%d, s%d, 64' % (S.T0, S.T0))
            e('s_add_u32 s%d, s%d, %d' % (S.T0, S.T0, STAMP_OFF))
            e('v_cmp_eq_u32 vcc, 0, v%d' % V.LANE)
            e('v_cndmask_b32_e64 v10, %s, 0, vcc' % BIG)
            for j in range(n):
                e('v_mov_b32 v8, s%d' % (S.STAMP + 2 * j))
                e('v_mov_b32 v9, s%d' % (S.STAMP + 2 * j + 1))
                e('buffer_store_dwordx2 v[8:9], v10, %s, s%d offen offset:%d' % (srd(SRD_WS), S.T0, 8 * j))
                e('s_nop 1')
        a.wait_vm(0)
        a.label('L_END')
        e('s_endpgm')
        a.label('L_CODE_END')

    def build(self):
        a, o = self.a, self.o
        a.raw('; @launch grid=(256,1,1) block=(512,1,1) lds=163840')
        a.raw('.amdgcn_target "amdgcn-amd-amdhsa--gfx950"')
        a.raw('.text')
        a.raw('.globl %s' % KLABEL)
        a.raw('.p2align 8')
        a.raw('.type %s,@function' % KLABEL)
        a.label(KLABEL)
        self.body()
        self.epilogue_end()
        a.raw('.section .rodata,"a"')
        a.raw('.p2align 6')
        a.raw('.amdhsa_kernel %s' % KLABEL)
        a.raw('  .amdhsa_next_free_vgpr 256')
        a.raw('  .amdhsa_next_free_sgpr 102')
        a.raw('  .amdhsa_accum_offset 256')
        a.raw('  .amdhsa_group_segment_fixed_size 0')
        a.raw('  .amdhsa_kernarg_size 88')
        a.raw('  .amdhsa_user_sgpr_count 2')
        a.raw('  .amdhsa_user_sgpr_kernarg_segment_ptr 1')
        a.raw('  .amdhsa_system_sgpr_workgroup_id_x 1')
        a.raw('.end_amdhsa_kernel')
        assert a.maxv <= 256 and a.maxs <= 102, (a.maxv, a.maxs)
        return a.text()

    def body(self):
        a, e, o = self.a, self.e, self.o
        self.prologue()
        self.phase0()
        self.hq_setup()
        self.stamp('h0')
        self.hq_pass()
        self.stamp('qend')
        if o.stop == 'h':
            a.wait_vm(0)
            self.epoch_store()
            return
        self.q_epilogue()
        if o.stop == 'q':
            a.wait_vm(0)
            self.epoch_store()
            return
        self.phase2()
        self.epoch_store()

    def epoch_store(self):
        e = self.e
        e('s_or_b32 s%d, s2, s%d' % (S.T0, S.W))
        e('s_cmp_eq_u32 s%d, 0' % S.T0)
        e('s_cselect_b32 s%d, %d, s%d' % (S.T0, EPOCH_OFF, BIGS))
        self.flag_store(S.T0, 'ep', 8)


def main():
    ap = argparse.ArgumentParser()
    ap.add_argument('-o', default='k.s')
    ap.add_argument('--stop', default='')
    ap.add_argument('--stamps', type=int, default=0)
    ap.add_argument('--rot', type=int, default=1)
    ap.add_argument('--codepf', type=int, default=1)
    ap.add_argument('--nfirst', type=int, default=2)
    ap.add_argument('--psleep', type=int, default=8)
    ap.add_argument('--stu', type=lambda s: [int(x) for x in s.split(',')], default=[0, 9])
    ap.add_argument('--dbg', default='')
    ap.add_argument('--bearly', type=int, default=0)
    ap.add_argument('--bu', type=int, default=0)
    ap.add_argument('--afu', type=int, default=1)
    ap.add_argument('--bfu', type=int, default=4)
    ap.add_argument('--apu', type=int, default=4)
    ap.add_argument('--rstu', type=int, default=3)
    ap.add_argument('--hpu', type=int, default=19)
    ap.add_argument('--nact0', type=int, default=4)
    ap.add_argument('--actgap', type=int, default=10)
    ap.add_argument('--str', dest='str_', type=lambda s: [int(x) for x in s.split(',')], default=[])
    ap.add_argument('--rsleep', type=int, default=4)
    ap.add_argument('--olag', type=int, default=2)
    ap.add_argument('--kvr', type=int, default=2)
    ap.add_argument('--ors', type=int, default=3)
    ap.add_argument('--gr', type=int, default=5)
    ap.add_argument('--st', type=lambda s: s.split(','), default='start,u0,u9,qend,e2,r3,red,end'.split(','))
    ap.add_argument('--vbud', type=int, default=20)
    ap.add_argument('--npre', type=int, default=2)
    ap.add_argument('--dpos', type=lambda s: [int(x) for x in s.split(',')], default=[0, 2, 4, 6])
    ap.add_argument('--hfstep', type=int, default=74)
    ap.add_argument('--p0bar', type=int, default=1)
    o = ap.parse_args()
    g = Gen(o)
    t = g.build()
    open(o.o, 'w').write(t)
    print('instructions', g.a.stats, 'maxv', g.a.maxv, 'maxs', g.a.maxs, file=sys.stderr)


if __name__ == '__main__':
    main()
```

```python
import sys, argparse
from asmfw import Asm

NAME = 'gated_mix__linear_kernel_hedgehog__dense_activation_silu__prompt'
KLABEL = NAME + '_kernel'

EPOCH_OFF = 0x0
WQ_OFF = 0x1000
WPHI_OFF = 0x290000
W2P_OFF = 0x300000
ACT_OFF = 0x600000
KVP_OFF = 0x1000000
KVP_STRIDE = 3584
G_OFF = 0x1100000
AF_OFF = 0x1110000
BF_OFF = 0x1118000
HF_OFF = 0x1120000
DUMP_OFF = 0x2000000
STAMP_OFF = 200 << 20
ACT_PT = 74 * 1024
BIG = '2.0'
BIGV = 0x40000000
LOG2E = 1.4426950408889634

SRD_X, SRD_W1, SRD_WS, SRD_WQKV, SRD_W2O, SRD_WPHI, SRD_GW, SRD_DBG, SRD_OUT = 4, 8, 12, 16, 20, 24, 28, 32, 36
SRD_CODE = 36
SRD_CODE = 52


BIGS = 101


def f2u(x):
    import struct
    return struct.unpack('<I', struct.pack('<f', x))[0]


def srd(n):
    return 's[%d:%d]' % (n, n + 3)


def vr(a, n=1):
    return 'v%d' % a if n == 1 else 'v[%d:%d]' % (a, a + n - 1)


def sr(a, n=1):
    return 's%d' % a if n == 1 else 's[%d:%d]' % (a, a + n - 1)


class S:
    W, R, C, RB, CB, PT, FH, W2K = 62, 63, 64, 65, 66, 67, 68, 69
    ST, XS, WS, QS, QST = 70, 71, 72, 73, 74
    HK0 = 75
    CNT = 76
    KQ, P32 = 77, 78
    TAG = 100
    WS4 = 30
    D0, D1 = 98, 99
    PS = 31
    NL2E, ONE2 = 32, 34
    WPS, APS, W5K, WPHS, L2E = 16, 17, 18, 19, 20
    WRS, ARS = 22, 26
    KVS = 28
    K0, K1 = 56, 57
    T0, T1, T2, T3, T4, T5, T6, T7 = 40, 41, 42, 43, 44, 45, 46, 47
    M0, M1, M2, M3 = 48, 50, 52, 54
    STAMP = 80


class V:
    LANE, L16 = 1, 2
    QR = 3
    M6, M7 = 6, 7
    AS = 8
    ACCH = 32
    ACCQ = 64
    X = 96
    XO0, XO1, WO0, WO1 = 64, 65, 66, 67
    XR = 68
    TR = 80
    HT = 84
    WPH = 176
    G1 = 6
    AV = [2, 3, 4, 5]
    ACTB = 112
    ACC2 = 176
    WB = 8


class Gen:
    def __init__(self, opt):
        self.o = opt
        self.a = Asm()
        self.nstamp = 0

    def e(self, t, tag=None):
        return self.a.e(t, tag)

    def stamp(self, name):
        if self.o.stamps and name in self.o.st:
            assert self.nstamp < 8
            self.e('%s %s' % ('s_memtime' if self.o.stamps == 2 else 's_memrealtime', sr(S.STAMP + 2 * self.nstamp, 2)))
            self.nstamp += 1

    def csel(self, d, x, y):
        self.e('s_mov_b32 s%d, %s' % (d, y))
        self.e('s_cmov_b32 s%d, %s' % (d, x))

    def mk_srd(self, n, ptr, size):
        e = self.e
        e('s_mov_b32 s%d, s%d' % (n, ptr))
        e('s_mov_b32 s%d, s%d' % (n + 1, ptr + 1))
        e('s_mov_b32 s%d, %d' % (n + 2, size))
        e('s_mov_b32 s%d, 0x00020000' % (n + 3))

    def dma(self, m0base, m0off, voff, sr_, so, imm, tag, sc1=False, pre=None, post=None):
        def f():
            if pre:
                pre()
            self.e('s_add_u32 m0, s%d, %d' % (m0base, m0off))
            self.e('buffer_load_dwordx4 v%d, %s, s%d offen%s%s lds' % (voff, srd(sr_), so, ' offset:%d' % imm if imm else '', ' sc1' if sc1 else ''), tag)
            if post:
                post()
        return f

    def load_x(self, slot, tag, post=None):
        return [self.dma(S.W2K, slot * 16384, V.XO0, SRD_X, S.XS, 0, tag),
                self.dma(S.W2K, slot * 16384, V.XO1, SRD_X, S.XS, 1024, tag, post=post)]

    def load_w(self, slot, tag, so=None, post=None):
        so = S.WS if so is None else so
        return [self.dma(S.W2K, slot * 16384, V.WO0, SRD_W1, so, 0, tag),
                self.dma(S.W2K, slot * 16384, V.WO1, SRD_W1, so, 1024, tag, post=post)]

    def adv_xw(self):
        e = self.e
        t0, t1 = S.D0, S.D1
        e('s_add_u32 s%d, s%d, 1' % (S.ST, S.ST))
        e('s_cmp_eq_u32 s%d, 10' % S.ST)
        self.csel(t0, 128 - 1280, 128)
        self.csel(t1, 221184 - 2211840, 221184)
        e('s_cselect_b32 s%d, 0, s%d' % (S.ST, S.ST))
        e('s_add_u32 s%d, s%d, s%d' % (S.XS, S.XS, t0))
        e('s_add_u32 s%d, s%d, s%d' % (S.WS, S.WS, t1))

    def load_xw(self, u):
        adv = self.adv_xw if u < 9 else None
        return self.load_x((2 * u) % 10, 'x%d' % u) + self.load_w((2 * u + 1) % 10, 'w%d' % u, post=adv)

    def adv_q(self):
        e = self.e
        e('s_add_u32 s%d, s%d, 1' % (S.QST, S.QST))
        e('s_cmp_eq_u32 s%d, 10' % S.QST)
        self.csel(S.D0, 16384 - 163840, 16384)
        e('s_cselect_b32 s%d, 0, s%d' % (S.QST, S.QST))
        e('s_add_u32 s%d, s%d, s%d' % (S.QS, S.QS, S.D0))

    def load_q(self, u):
        return [self.dma(S.W2K, u * 16384, V.L16, SRD_WS, S.QS, 0, 'q%d' % u, sc1=True),
                self.dma(S.W2K, u * 16384, V.L16, SRD_WS, S.QS, 1024, 'q%d' % u, sc1=True, post=self.adv_q if u < 9 else None)]

    def run(self, lst):
        for f in lst:
            f()

    def prologue(self):
        a, e, o = self.a, self.e, self.o
        L = V.LANE
        e('s_cmp_ge_u32 s2, 256')
        e('s_cbranch_scc1 L_END')
        e('s_load_dwordx16 s[40:55], s[0:1], 0')
        e('s_load_dwordx4 s[56:59], s[0:1], 64')
        e('s_load_dwordx2 s[60:61], s[0:1], 80')
        self.stamp('start')
        e('v_lshrrev_b32 v3, 6, v0')
        e('v_and_b32 v%d, 63, v0' % V.LANE)
        e('v_readfirstlane_b32 s%d, v3' % S.W)
        e('v_lshlrev_b32 v%d, 4, v%d' % (V.L16, V.LANE))
        t0, t1, t2, t3 = 79, S.CNT, S.KQ, S.P32
        e('s_and_b32 s%d, s2, 7' % t0)
        e('s_bfe_u32 s%d, s2, 0x30003' % t2)
        e('s_lshr_b32 s%d, s2, 6' % t3)
        e('s_and_b32 s%d, s%d, 4' % (S.CB, t0))
        e('s_add_u32 s%d, s%d, s%d' % (S.CB, S.CB, t3))
        e('s_and_b32 s%d, s%d, 3' % (S.RB, t0))
        e('s_lshl_b32 s%d, s%d, 3' % (S.RB, S.RB))
        e('s_add_u32 s%d, s%d, s%d' % (S.RB, S.RB, t2))
        e('s_and_b32 s%d, s%d, 15' % (S.R, S.RB))
        e('s_and_b32 s%d, s%d, 6' % (S.C, t0))
        e('s_lshl_b32 s%d, s%d, 1' % (S.C, S.C))
        e('s_add_u32 s%d, s%d, s%d' % (S.C, S.C, t3))
        e('s_lshl_b32 s%d, s%d, 11' % (S.W2K, S.W))
        e('s_mov_b32 s%d, %d' % (BIGS, BIGV))
        SCR = self.SCR = 8 * 16384
        T = self.T = V.X + 70
        G = self.G = V.X + 128
        if o.rot == 2:
            e('s_mul_i32 s%d, s%d, 5' % (t0, t3))
            e('s_add_u32 s%d, s%d, 1' % (t0, t0))
            e('s_lshr_b32 s%d, s%d, 1' % (t0, t0))
            e('s_add_u32 s%d, s%d, s%d' % (t0, S.R, t0))
        else:
            e('s_add_u32 s%d, s%d, s%d' % (t0, S.R, S.C))
        if o.rot:
            e('s_mul_i32 s%d, s%d, 26' % (t1, t0))
            e('s_lshr_b32 s%d, s%d, 8' % (t1, t1))
            e('s_mul_i32 s%d, s%d, 10' % (t1, t1))
            e('s_sub_u32 s%d, s%d, s%d' % (S.ST, t0, t1))
        else:
            e('s_mov_b32 s%d, 0' % S.ST)
        e('s_lshl_b32 s%d, s%d, 3' % (t0, S.R))
        e('s_add_u32 s%d, s%d, s%d' % (t0, t0, S.W))
        e('s_mul_i32 s%d, s%d, 20480' % (t0, t0))
        e('s_lshl_b32 s%d, s%d, 7' % (t1, S.ST))
        e('s_add_u32 s%d, s%d, s%d' % (S.XS, t0, t1))
        e('v_lshrrev_b32 v3, 3, v%d' % L)
        e('v_mul_u32_u24 v3, 1280, v3')
        e('v_and_b32 v4, 7, v%d' % L)
        e('v_lshrrev_b32 v%d, 4, v%d' % (T + 10, L))
        e('v_xor_b32 v4, v4, v%d' % (T + 10))
        e('v_lshl_add_u32 v%d, v4, 4, v3' % V.XO0)
        e('v_xor_b32 v%d, 64, v%d' % (V.XO1, V.XO0))
        e('v_add_u32 v%d, %d, v%d' % (V.XO1, 8 * 1280 - 1024, V.XO1))
        e('s_lshl_b32 s%d, s%d, 8' % (t0, S.C))
        e('s_lshl_b32 s%d, s%d, 7' % (t1, S.C))
        e('s_add_u32 s%d, s%d, 1408' % (t1, t1))
        e('s_min_u32 s%d, s%d, s%d' % (t0, t0, t1))
        e('s_lshr_b32 s%d, s%d, 6' % (S.HK0, t0))
        e('s_lshl_b32 s%d, s%d, 3' % (t1, S.ST))
        e('s_add_u32 s%d, s%d, s%d' % (t1, t1, S.W))
        e('s_mul_i32 s%d, s%d, %d' % (t1, t1, 8 * 3456))
        e('s_add_u32 s%d, s%d, s%d' % (S.WS, t0, t1))
        e('v_and_b32 v%d, 3, v%d' % (T + 9, L))
        e('v_bfe_u32 v%d, v%d, 2, 2' % (T + 8, L))
        e('v_mul_u32_u24 v3, 3456, v%d' % (T + 8))
        e('v_lshl_add_u32 v3, v%d, 6, v3' % (T + 10))
        e('v_lshl_add_u32 v3, v%d, 4, v3' % (T + 9))
        e('s_cmp_ge_u32 s%d, 11' % S.C)
        e('s_cselect_b32 vcc_hi, 0, -1')
        e('s_mov_b32 vcc_lo, -1')
        e('v_cndmask_b32_e64 v%d, %s, v3, vcc' % (V.WO0, BIG))
        e('v_add_u32 v%d, %d, v%d' % (V.WO1, 4 * 3456 - 1024, V.WO0))
        A1, A2, A3 = 96, 97, S.P32
        O = self.O = 79
        e('s_mul_i32 s%d, s%d, 5' % (O, S.R))
        e('s_add_u32 s%d, s%d, s%d' % (O, O, S.W))
        e('s_sub_u32 s%d, s%d, 3' % (O, O))
        e('s_mul_i32 s%d, s%d, %d' % (A1, O, 8 * 3840))
        e('s_mul_i32 s%d, s%d, 80' % (A2, S.C))
        e('s_add_u32 s%d, s%d, s%d' % (A1, A1, A2))
        e('s_add_u32 s%d, s%d, %d' % (A2, A1, 4 * 3840 - 960))
        e('v_mul_u32_u24 v%d, 4370, v%d' % (T, L))
        e('v_lshrrev_b32 v%d, 16, v%d' % (T, T))
        e('v_mul_u32_u24 v%d, 15, v%d' % (T + 1, T))
        e('v_sub_u32 v%d, v%d, v%d' % (T + 1, L, T + 1))
        e('v_mul_u32_u24 v%d, 52, v%d' % (T + 2, T + 1))
        e('v_lshrrev_b32 v%d, 8, v%d' % (T + 2, T + 2))
        e('v_mul_u32_u24 v%d, 3840, v%d' % (T, T))
        e('v_lshl_add_u32 v%d, v%d, 4, v%d' % (T, T + 1, T))
        e('v_mul_u32_u24 v%d, 1200, v%d' % (T + 2, T + 2))
        e('v_add_u32 v%d, v%d, v%d' % (T, T, T + 2))
        WPH = SRD_W2O
        e('s_cmp_ge_u32 s%d, 6' % S.R)
        e('s_cselect_b32 s%d, 1, 0' % WPH)
        e('s_lshl_b32 s%d, s%d, 1' % (A3, S.C))
        e('s_add_u32 s%d, s%d, s%d' % (A3, A3, WPH))
        e('s_mul_i32 s%d, s%d, 800' % (A3, A3))
        e('s_cmp_eq_u32 s%d, 3' % S.W)
        e('s_cselect_b32 s%d, s%d, %d' % (A3, A3, BIGV))
        WPS = self.WPS = SCR + 10240
        e('s_cselect_b32 s%d, 0, 0x400' % (WPH + 1))
        e('v_cmp_gt_u32 vcc, 50, v%d' % L)
        e('s_lshl_b32 s%d, s%d, 4' % (WPH + 2, O))
        e('v_cndmask_b32_e64 v%d, %s, v%d, vcc' % (T + 1, BIG, V.L16))
        e('s_mov_b32 s%d, s%d' % (S.QST, S.ST))
        e('s_mov_b32 s%d, %d' % (SRD_X + 2, 2621440))
        e('s_mov_b32 s%d, 0x00020000' % (SRD_X + 3))
        e('s_mov_b32 s%d, %d' % (SRD_W1 + 2, 2211840))
        e('s_mov_b32 s%d, 0x00020000' % (SRD_W1 + 3))
        e('s_mov_b64 %s, s[40:41]' % sr(SRD_X, 2))
        e('s_mov_b64 %s, s[50:51]' % sr(SRD_W1, 2))
        self.stamp('ka')
        self.run(self.load_xw(0))
        e('s_load_dword s%d, s[60:61], %d' % (S.TAG, EPOCH_OFF))
        e('s_and_b32 s%d, s%d, 3' % (S.PT, S.W))
        e('s_lshr_b32 s%d, s%d, 2' % (S.FH, S.W))
        if o.p0bar:
            a.barrier()
        e('s_cmp_lt_u32 s%d, 3' % S.W)
        e('s_cbranch_scc1 L_JOINA')
        endB = a.snapshot()
        e('s_add_u32 m0, s%d, %d' % (S.W2K, SCR - 3 * 2048))
        self.mk_srd(SRD_WQKV, 42, 2457600)
        self.mk_srd(SRD_WPHI, 44, 25600)
        self.mk_srd(SRD_GW, 54, 1280)
        e('s_mov_b32 exec_hi, 0x0fffffff')
        e('buffer_load_dwordx4 v%d, %s, s%d offen lds' % (T, srd(SRD_WQKV), BIGS if 'A' in o.dbg else A1), 'g0')
        e('buffer_load_dwordx4 v%d, %s, s%d offen offset:960 lds' % (T, srd(SRD_WQKV), BIGS if 'A' in o.dbg else A2), 'g0')
        e('s_mov_b32 exec_hi, -1')
        e('s_add_u32 m0, s%d, %d' % (WPH + 1, WPS))
        e('buffer_load_dwordx4 v%d, %s, s%d offen lds' % (T + 1, srd(SRD_WPHI), A3), 'g0')
        e('buffer_load_dwordx4 %s, off, %s, s%d' % (vr(G + 16, 4), srd(SRD_GW), WPH + 2), 'g0')
        endA = a.snapshot()
        a.label('L_JOINA')
        a.merge(endA, endB)
        self.stamp('bar0')
        self.b_setup()
        self.mk_srd(SRD_WS, 60, 268435456)
        self.mk_srd(SRD_OUT, 56, 2621440)
        for u in range(1, o.nfirst):
            self.run(self.load_xw(u))
        self.stamp('ri')

    SRD_W2, SRD_WO = 16, 24
    BS = [28, 29, 30]
    BST = [S.KQ, S.P32]
    BW = 21
    BV, BR = V.HT + 11, V.HT + 8
    BL = V.X + 144

    def b_setup(self):
        a, e, o = self.a, self.e, self.o
        L = V.LANE
        t0, t1, t2, t3 = 96, 97, S.D0, S.D1
        BS, BST = self.BS, self.BST
        SB = o.bslot * 16384
        self.mk_srd(self.SRD_W2, 52, 2211840)
        self.mk_srd(self.SRD_WO, 46, 819200)
        e('s_mul_i32 s%d, s%d, 160' % (t3, S.CB))
        e('s_mul_i32 s%d, s%d, %d' % (BS[0], S.RB, 32 * 1280))
        e('s_mul_i32 s%d, s%d, %d' % (t0, S.W, 4 * 1280))
        e('s_add_u32 s%d, s%d, s%d' % (BS[0], BS[0], t0))
        e('s_add_u32 s%d, s%d, s%d' % (BS[0], BS[0], t3))
        e('s_add_u32 s%d, s%d, %d' % (BS[1], BS[0], 32 * 32 * 1280))
        e('s_add_u32 s%d, s%d, 10' % (t0, S.RB))
        e('s_sub_u32 s%d, s%d, 22' % (t1, S.RB))
        e('s_cmp_lt_u32 s%d, 10' % S.RB)
        e('s_cselect_b32 s%d, s%d, s%d' % (t0, t0, t1))
        e('s_add_u32 s%d, s%d, 54' % (BST[1], t0))
        e('s_cmp_lt_u32 s%d, 20' % t0)
        e('s_cselect_b32 s%d, s%d, 255' % (BST[1], BST[1]))
        e('s_cselect_b32 s%d, s%d, 0' % (t0, t0))
        e('s_lshl_b32 s%d, s%d, 2' % (t0, t0))
        e('s_lshr_b32 s%d, s%d, 1' % (t1, S.W))
        e('s_add_u32 s%d, s%d, s%d' % (t0, t0, t1))
        e('s_mul_i32 s%d, s%d, 205' % (t1, t0))
        e('s_lshr_b32 s%d, s%d, 10' % (t1, t1))
        e('s_mul_i32 s%d, s%d, 5' % (t1, t1))
        e('s_sub_u32 s%d, s%d, s%d' % (t1, t0, t1))
        e('s_lshl_b32 s%d, s%d, 3' % (t0, t0))
        e('s_and_b32 s%d, s%d, 1' % (t2, S.W))
        e('s_lshl_b32 s%d, s%d, 2' % (BS[2], t2))
        e('s_cmp_ge_u32 s%d, 2' % t1)
        e('s_cselect_b32 s%d, 4, 0' % self.BW)
        e('s_add_u32 s%d, s%d, s%d' % (BS[2], BS[2], self.BW))
        e('s_cmp_eq_u32 s%d, 0' % t2)
        e('s_cselect_b32 s%d, -16, 4' % t2)
        e('s_cmp_eq_u32 s%d, 4' % t1)
        e('s_cselect_b32 s%d, s%d, s%d' % (BS[2], t2, BS[2]))
        e('s_add_u32 s%d, s%d, s%d' % (BS[2], BS[2], t0))
        e('s_mul_i32 s%d, s%d, 1280' % (BS[2], BS[2]))
        e('s_add_u32 s%d, s%d, s%d' % (BS[2], BS[2], t3))
        e('s_cmp_lt_u32 s%d, 74' % BST[1])
        e('s_cselect_b32 s%d, s%d, s%d' % (BS[2], BS[2], BIGS))
        e('s_mul_i32 s%d, s%d, 640' % (self.BW, S.W))
        e('s_add_u32 s%d, s%d, %d' % (self.BW, self.BW, SB))
        e('s_add_u32 s%d, s%d, 32' % (t0, S.RB))
        e('s_cmp_lt_u32 s%d, 22' % S.RB)
        e('s_cselect_b32 s%d, s%d, 255' % (t0, t0))
        e('s_cmp_ge_u32 s%d, 2' % S.W)
        e('s_cselect_b32 s%d, s%d, s%d' % (BST[1], BST[1], t0))
        self.csel(t2, 2 * 5120 - 2 * 32, 5120 + 3 * 32)
        e('s_cselect_b32 s%d, -2, 3' % t3)
        e('s_cmp_eq_u32 s%d, 7' % S.W)
        e('s_cselect_b32 s%d, 255, s%d' % (BST[1], BST[1]))
        e('s_cmp_ge_u32 s%d, 5' % S.W)
        e('s_cselect_b32 s%d, s%d, s%d' % (BST[0], t0, S.RB))
        e('s_cselect_b32 s%d, %d, 0' % (t1, 5120 - 5 * 32))
        e('s_cselect_b32 s%d, -5, 0' % t0)
        T = self.BV
        e('v_lshrrev_b32 v%d, 4, v%d' % (self.BR, L))
        e('v_mul_u32_u24 v%d, 1280, v%d' % (self.BR, self.BR))
        e('v_bfe_u32 v%d, v%d, 2, 2' % (T, L))
        e('v_mul_u32_u24 v%d, 160, v%d' % (T, T))
        e('v_add_u32 v%d, v%d, v%d' % (self.BR, self.BR, T))
        e('v_and_b32 v%d, 3, v%d' % (T, L))
        e('v_lshl_add_u32 v%d, v%d, 3, v%d' % (self.BR, T, self.BR))
        e('s_lshl_b32 vcc_lo, s%d, 5' % S.W)
        e('s_add_u32 vcc_lo, vcc_lo, %d' % SB)
        e('s_add_u32 s%d, s%d, vcc_lo' % (t1, t1))
        e('s_add_u32 s%d, s%d, vcc_lo' % (t2, t2))
        e('v_add_u32 v%d, s%d, v%d' % (self.BR + 1, t2, self.BR))
        e('v_add_u32 v%d, s%d, v%d' % (self.BR, t1, self.BR))
        e('s_mul_i32 vcc_lo, s%d, 74' % S.CB)
        for k, tt in ((0, t0), (1, t3)):
            e('s_add_u32 s%d, s%d, s%d' % (tt, tt, S.W))
            e('s_lshl_b32 s%d, s%d, 10' % (tt, tt))
            e('s_add_u32 vcc_hi, vcc_lo, s%d' % BST[k])
            e('s_mul_i32 vcc_hi, vcc_hi, 5120')
            e('s_add_u32 vcc_hi, vcc_hi, s%d' % tt)
            e('s_add_u32 vcc_hi, vcc_hi, %d' % W2P_OFF)
            e('s_cmp_lt_u32 s%d, 74' % BST[k])
            e('s_cselect_b32 s%d, vcc_hi, s%d' % (BST[k], BIGS))
        e('v_mul_u32_u24 v%d, 6554, v%d' % (T, L))
        e('v_lshrrev_b32 v%d, 16, v%d' % (T, T))
        e('v_mul_u32_u24 v%d, 1120, v%d' % (T, T))
        e('v_add_u32 v%d, v%d, v%d' % (T, T, V.L16))
        e('v_cmp_gt_u32 vcc, 40, v%d' % L)
        e('v_cndmask_b32_e64 v%d, %s, v%d, vcc' % (T, BIG, T))

    def b_load(self):
        L = []
        for j in range(3):
            def f(j=j):
                self.e('buffer_load_dwordx4 %s, v%d, %s, s%d offen' % (vr(self.BL + 4 * j, 4), self.BV, srd(self.SRD_WO if j == 2 else self.SRD_W2), BIGS if 'B' in self.o.dbg else self.BS[j]), 'gb')
            L.append(f)
        return L

    def b_write(self):
        e = self.e
        e('v_add_u32 v%d, s%d, v%d' % (self.BV, self.BW, V.L16))
        e('s_mov_b32 exec_hi, 0xff')
        for j in range(3):
            e('ds_write_b128 v%d, %s offset:%d' % (self.BV, vr(self.BL + 4 * j, 4), 5120 * j))
        e('s_mov_b32 exec_hi, -1')

    def b_read(self):
        for k in range(2):
            for i in range(2):
                self.e('ds_read_b64_tr_b16 %s, v%d offset:%d' % (vr(V.HT + 4 * k + 2 * i, 2), self.BR + k, i * 640))

    def b_store(self):
        L = []
        for k in range(2):
            def f(k=k):
                self.e('buffer_store_dwordx4 %s, v%d, %s, s%d offen sc1' % (vr(V.HT + 4 * k, 4), V.L16, srd(SRD_WS), self.BST[k]), 'pbst')
            L.append(f)
        return L

    def phase0(self):
        a, e, o = self.a, self.e, self.o
        L = V.LANE
        SCR, T, WPS, O = self.SCR, self.T, self.WPS, self.O
        ONES = self.ONES = V.X + 60
        m0, m1, m2 = S.M0, S.M1, S.M2
        KVR = self.KVR = S.M3
        e('v_and_b32 v%d, 31, v%d' % (T, L))
        e('v_lshlrev_b32 v%d, 4, v%d' % (T, T))
        e('v_lshrrev_b32 v%d, 5, v%d' % (T + 1, L))
        e('v_lshl_add_u32 v%d, v%d, 10, v%d' % (T, T + 1, T))
        e('v_lshlrev_b32 v%d, 4, v0' % (T + 1))
        e('v_cmp_gt_u32 vcc, %d, v0' % (192 + 224))
        e('v_cndmask_b32_e64 v%d, %s, v%d, vcc' % (T + 1, BIG, T + 1))
        e('s_cmp_ge_u32 s%d, 3' % S.W)
        e('s_cbranch_scc1 L_ROLEA2')
        snap = a.snapshot()
        e('s_mov_b32 s%d, s%d' % (m2, BIGS))
        e('s_mov_b32 s%d, s%d' % (m2 + 1, BIGS))
        e('s_mov_b32 s%d, s%d' % (KVR, BIGS))
        e('v_mov_b32 v%d, 0' % (T + 7))
        e('v_mov_b32 v%d, 0' % (T + 3))
        e('v_mov_b32 v%d, 0' % (T + 4))
        e('s_branch L_JOIN0')
        endB = a.snapshot()
        a.restore(snap)
        a.label('L_ROLEA2')
        HH, IDX, TILE, BLK = SRD_W2O, S.T5, S.T6, S.T7
        for i in range(4):
            e('v_mov_b32 v%d, -1' % (ONES + i))
        e('v_lshl_add_u32 v%d, v%d, 2, v%d' % (T + 2, T + 10, T + 9))
        e('v_and_b32 v%d, 7, v%d' % (T + 3, T + 2))
        e('v_lshrrev_b32 v%d, 3, v%d' % (T + 4, T + 2))
        e('v_lshlrev_b32 v%d, 4, v%d' % (T + 5, T + 3))
        e('v_lshl_add_u32 v%d, v%d, 3, v%d' % (T + 5, T + 4, T + 5))
        e('v_add_u32 v%d, 80, v%d' % (T + 5, T + 5))
        e('v_mul_u32_u24 v%d, 80, v%d' % (T + 6, T + 4))
        e('v_lshlrev_b32 v%d, 3, v%d' % (T + 7, T + 3))
        e('v_sub_u32 v%d, v%d, v%d' % (T + 7, T + 7, T + 6))
        e('v_add_u32 v%d, 80, v%d' % (T + 7, T + 7))
        e('v_cmp_le_u32 vcc, 5, v%d' % (T + 3))
        e('v_cndmask_b32_e32 v%d, v%d, v%d, vcc' % (T + 7, T + 7, T + 5))
        e('v_mul_u32_u24 v%d, 240, v%d' % (T + 5, T + 8))
        e('v_add_u32 v%d, v%d, v%d' % (T + 7, T + 7, T + 5))
        e('v_add_u32 v%d, s%d, v%d' % (T + 7, S.W2K, T + 7))
        e('v_add_u32 v%d, %d, v%d' % (T + 7, SCR - 3 * 2048, T + 7))
        e('s_mul_i32 s%d, s%d, 6' % (IDX, HH))
        e('s_sub_u32 s%d, s%d, s%d' % (IDX, S.R, IDX))
        e('s_cmp_ge_u32 s%d, 3' % IDX)
        e('s_cselect_b32 s%d, 1, 0' % TILE)
        e('s_mul_i32 s%d, s%d, 3' % (BLK, TILE))
        e('s_sub_u32 s%d, s%d, s%d' % (BLK, IDX, BLK))
        e('s_cmp_eq_u32 s%d, 1' % BLK)
        self.csel(m0, '0xaaaaaaaa', '0x55555555')
        e('s_cmp_eq_u32 s%d, 0' % BLK)
        self.csel(m1, '0x55555555', '0xaaaaaaaa')
        e('s_cmp_eq_u32 s%d, 1' % TILE)
        e('s_cselect_b32 s%d, 0x3333, -1' % m2)
        e('s_cselect_b32 s%d, 0, 8' % (m2 + 1))
        e('s_cselect_b32 s%d, 32, 0' % TILE)
        e('s_and_b32 s%d, s%d, s%d' % (m0, m0, m2))
        e('s_and_b32 s%d, s%d, s%d' % (m1, m1, m2))
        e('s_cmp_ge_u32 s%d, 2' % BLK)
        e('s_cselect_b32 s%d, 0, s%d' % (m0 + 1, m0))
        e('s_cselect_b32 s%d, 0, s%d' % (m1 + 1, m1))
        e('s_cselect_b32 s%d, 640, 0' % IDX)
        self.csel(BLK, 640, 320)
        e('s_add_u32 s%d, s%d, s%d' % (IDX, IDX, TILE))
        e('s_add_u32 s%d, s%d, s%d' % (BLK, BLK, TILE))
        e('v_bfe_u32 v%d, v%d, 4, 1' % (T + 2, L))
        e('v_bfe_u32 v%d, v%d, 1, 1' % (T + 3, L))
        e('v_lshl_add_u32 v%d, v%d, 1, v%d' % (T + 2, T + 2, T + 3))
        e('v_mul_u32_u24 v%d, s%d, v%d' % (T + 2, m2 + 1, T + 2))
        e('v_lshrrev_b32 v%d, 5, v%d' % (T + 3, L))
        e('v_lshl_add_u32 v%d, v%d, 2, v%d' % (T + 3, T + 3, T + 8))
        e('v_mul_u32_u24 v%d, 40, v%d' % (T + 3, T + 3))
        e('v_add_u32 v%d, v%d, v%d' % (T + 2, T + 2, T + 3))
        e('v_add_u32 v%d, s%d, v%d' % (T + 3, IDX, T + 2))
        e('v_add_u32 v%d, s%d, v%d' % (T + 4, BLK, T + 2))
        e('v_mov_b32 v%d, 800' % (T + 2))
        e('v_cndmask_b32_e64 v%d, v%d, v%d, %s' % (T + 3, T + 2, T + 3, sr(m0, 2)))
        e('v_cndmask_b32_e64 v%d, v%d, v%d, %s' % (T + 4, T + 2, T + 4, sr(m1, 2)))
        e('v_add_u32 v%d, %d, v%d' % (T + 3, WPS, T + 3))
        e('v_add_u32 v%d, %d, v%d' % (T + 4, WPS, T + 4))
        e('s_mul_i32 s%d, s%d, 163840' % (m2, S.C))
        e('s_lshr_b32 s%d, s%d, 1' % (m2 + 1, O))
        e('s_lshl_b32 s%d, s%d, 12' % (m2 + 1, m2 + 1))
        e('s_add_u32 s%d, s%d, s%d' % (m2, m2, m2 + 1))
        e('s_and_b32 s%d, s%d, 1' % (m2 + 1, O))
        e('s_lshl_b32 s%d, s%d, 9' % (m2 + 1, m2 + 1))
        e('s_add_u32 s%d, s%d, s%d' % (m2, m2, m2 + 1))
        e('s_add_u32 s%d, s%d, %d' % (m2, m2, WQ_OFF))
        e('s_mul_i32 s%d, s%d, 12' % (m2 + 1, S.C))
        e('s_add_u32 s%d, s%d, s%d' % (m2 + 1, m2 + 1, S.R))
        e('s_lshl_b32 s%d, s%d, 10' % (m2 + 1, m2 + 1))
        e('s_add_u32 s%d, s%d, %d' % (m2 + 1, m2 + 1, WPHI_OFF))
        e('s_cmp_eq_u32 s%d, 3' % S.W)
        e('s_cselect_b32 s%d, s%d, %d' % (m2 + 1, m2 + 1, BIGV))
        e('s_cmp_lt_u32 s%d, 12' % S.R)
        e('s_cselect_b32 s%d, s%d, %d' % (m2 + 1, m2 + 1, BIGV))
        e('s_lshl_b32 s%d, s%d, 4' % (KVR, S.C))
        e('s_add_u32 s%d, s%d, s%d' % (KVR, KVR, S.R))
        e('s_mul_i32 s%d, s%d, %d' % (KVR, KVR, KVP_STRIDE))
        e('s_add_u32 s%d, s%d, %d' % (KVR, KVR, KVP_OFF - 192 * 16))
        endA = a.snapshot()
        a.label('L_JOIN0')
        a.merge(endA, endB)
        self.stamp('p0')
        e('v_cmp_eq_u32 %s, 60, v%d' % (sr(m0, 2), L))
        e('v_cmp_le_u32 %s, 60, v%d' % (sr(m1, 2), L))
        for u in range(o.nfirst, o.npre):
            self.run(self.load_xw(u))
        t0, t1 = S.T0, S.T1
        e('s_mul_i32 s%d, s%d, 163840' % (t0, S.C))
        e('s_lshl_b32 s%d, s%d, 14' % (t1, S.QST))
        e('s_add_u32 s%d, s%d, s%d' % (t0, t0, t1))
        e('s_add_u32 s%d, s%d, s%d' % (S.QS, t0, S.W2K))
        e('s_add_u32 s%d, s%d, %d' % (S.QS, S.QS, WQ_OFF))

    def a_fill(self):
        T, G, ONES = self.T, self.G, self.ONES
        m0, m1, m2 = S.M0, S.M1, S.M2
        F1 = [lambda: self.a.wait_vm_tag('g0')]
        for hh in range(2):
            for i in range(2):
                F1.append('ds_read_b64_tr_b16 %s, v%d offset:%d' % (vr(G + 4 * hh + 2 * i, 2), T + 7, i * 960 + hh * 40))
        F1.append('ds_read_b64_tr_b16 %s, v%d' % (vr(G + 8, 2), T + 3))
        F1.append('ds_read_b64_tr_b16 %s, v%d' % (vr(G + 10, 2), T + 4))
        F1.append(('buffer_store_dwordx4 %s, v%d, %s, s%d offen sc1' % (vr(ONES, 4), T + 1, srd(SRD_WS), self.KVR), 'p0st'))
        for i in range(4):
            F1.append('v_cndmask_b32_e64 v%d, 0, v%d, %s' % (G + 16 + i, G + 16 + i, sr(m0, 2)))
        F2 = []
        for hh in range(2):
            for i in range(4):
                F2.append('v_cndmask_b32_e64 v%d, v%d, v%d, %s' % (G + 4 * hh + i, G + 4 * hh + i, G + 16 + i, sr(m1, 2)))
            F2.append(('buffer_store_dwordx4 %s, v%d, %s, s%d offen offset:%d sc1' % (vr(G + 4 * hh, 4), T, srd(SRD_WS), m2, hh * 2048), 'p0st'))
        F2.append(('buffer_store_dwordx4 %s, v%d, %s, s%d offen sc1' % (vr(G + 8, 4), V.L16, srd(SRD_WS), m2 + 1), 'p0st'))
        return F1, F2

    def flag_store(self, soff, tag, vt):
        e = self.e
        e('v_mov_b32 v%d, s%d' % (vt, S.TAG))
        e('v_lshlrev_b32 v%d, 2, v%d' % (vt + 1, V.LANE))
        e('s_mov_b32 exec_hi, 0')
        e('buffer_store_dword v%d, v%d, %s, s%d offen sc1' % (vt, vt + 1, srd(SRD_WS), soff), tag)
        e('s_mov_b32 exec_hi, -1')

    def wg_flag_store(self, off, hi, lo, sh, vt, tag):
        e = self.e
        e('s_lshl_b32 s%d, s%d, %d' % (S.T0, hi, sh))
        e('s_add_u32 s%d, s%d, s%d' % (S.T0, S.T0, lo))
        e('s_lshl_b32 s%d, s%d, 7' % (S.T0, S.T0))
        e('s_add_u32 s%d, s%d, %d' % (S.T0, S.T0, off))
        e('s_cmp_eq_u32 s%d, 0' % S.W)
        e('s_cselect_b32 s%d, s%d, s%d' % (S.T0, S.T0, BIGS))
        self.flag_store(S.T0, tag, vt)

    def poll_issue(self, vd, va, sp, off, hi, nl, wave, tag, again=False):
        a, e = self.a, self.e
        ld = a.newlabel('L_PI')
        if not again:
            e('s_mul_i32 s%d, s%d, %d' % (sp, hi, nl * 128))
            e('s_add_u32 s%d, s%d, %d' % (sp, sp, off))
            e('v_and_b32 v%d, %d, v%d' % (va, nl - 1, V.LANE))
            e('v_lshlrev_b32 v%d, 7, v%d' % (va, va))
        e('s_cmp_lg_u32 s%d, %d' % (S.W, wave))
        e('s_cbranch_scc1 %s' % ld)
        snap = a.snapshot()
        e('buffer_load_dword v%d, v%d, %s, s%d offen sc1' % (vd, va, srd(SRD_WS), sp), tag)
        end = a.snapshot()
        a.label(ld)
        a.merge(snap, end)

    def poll_check(self, vds, va, sp, wave, maxit=4000):
        a, e = self.a, self.e
        lo, ld = a.newlabel('L_PL'), a.newlabel('L_PD')
        e('s_cmp_lg_u32 s%d, %d' % (S.W, wave))
        e('s_cbranch_scc1 %s' % ld)
        snaps = [a.snapshot()]
        for vd in vds:
            e('v_cmp_ne_u32 vcc, s%d, v%d' % (S.TAG, vd))
            e('s_mov_b32 s%d, %d' % (S.CNT, maxit))
            e('s_cbranch_vccz %s' % ld)
            snaps.append(a.snapshot())
        a.label(lo)
        if self.o.psleep:
            e('s_sleep %d' % self.o.psleep)
        e('buffer_load_dword v%d, v%d, %s, s%d offen sc1' % (vd, va, srd(SRD_WS), sp), 'pl')
        a.wait_vm(0)
        e('s_sub_u32 s%d, s%d, 1' % (S.CNT, S.CNT))
        e('s_cmp_eq_u32 s%d, 0' % S.CNT)
        e('s_cbranch_scc1 %s' % ld)
        e('v_cmp_ne_u32 vcc, s%d, v%d' % (S.TAG, vd))
        e('s_cbranch_vccnz %s' % lo)
        end = a.snapshot()
        a.label(ld)
        a.merge(snaps[0], end)
        for sn in snaps[1:]:
            a.merge(a.snapshot(), sn)

    def add_poll(self, pre, post, units, cu, vds, va, off, hi, nl, tag):
        w = self.o.pw
        for k, u in enumerate(units):
            post[u].insert(0, lambda k=k: self.poll_issue(vds[k], va, S.PS, off, hi, nl, w, tag, again=k > 0))
        pre[cu].append(lambda: self.poll_check(vds[:len(units)], va, S.PS, w))

    def hq_setup(self):
        e = self.e
        L = V.LANE
        T = V.HT
        e('v_and_b32 v%d, 31, v%d' % (T, L))
        e('s_lshl_b32 s%d, s%d, 12' % (S.T0, S.PT))
        e('v_lshlrev_b32 v%d, 7, v%d' % (T + 1, T))
        e('v_add_u32 v%d, s%d, v%d' % (T + 1, S.T0, T + 1))
        e('v_bfe_u32 v%d, v%d, 1, 3' % (T + 2, L))
        e('v_lshrrev_b32 v%d, 5, v%d' % (T + 3, L))
        e('v_xor_b32 v%d, v%d, v%d' % (T + 2, T + 2, T + 3))
        e('v_lshl_add_u32 v%d, v%d, 4, v%d' % (V.XR, T + 2, T + 1))
        for kk in range(1, 4):
            e('v_xor_b32 v%d, %d, v%d' % (V.XR + kk, kk * 32, V.XR))
        for win in (1, 2):
            for kk in range(4):
                e('v_add_u32 v%d, %d, v%d' % (V.XR + 4 * win + kk, win * 65536, V.XR + kk))
        e('v_lshlrev_b32 v%d, 11, v%d' % (T, T + 3))
        e('v_bfe_u32 v%d, v%d, 2, 2' % (T + 1, L))
        e('v_lshl_add_u32 v%d, v%d, 6, v%d' % (T, T + 1, T))
        e('v_bfe_u32 v%d, v%d, 4, 1' % (T + 1, L))
        e('v_lshl_add_u32 v%d, v%d, 5, v%d' % (T, T + 1, T))
        e('v_and_b32 v%d, 1, v%d' % (T + 1, L))
        e('v_lshl_add_u32 v%d, v%d, 4, v%d' % (T, T + 1, T))
        e('v_bfe_u32 v%d, v%d, 1, 1' % (T + 1, L))
        e('v_lshl_add_u32 v%d, v%d, 3, v%d' % (T, T + 1, T))
        e('s_lshl_b32 s%d, s%d, 9' % (S.T0, S.FH))
        e('v_add_u32 v%d, s%d, v%d' % (V.TR, S.T0, T))
        e('v_add_u32 v%d, %d, v%d' % (V.TR + 1, 65536, V.TR))
        e('v_add_u32 v%d, %d, v%d' % (V.TR + 2, 131072, V.TR))
        e('s_lshl_b32 s%d, s%d, 11' % (S.T0, S.FH))
        e('v_add_u32 v%d, s%d, v%d' % (V.QR, S.T0, V.L16))
        e('v_add_u32 v%d, %d, v%d' % (V.QR + 1, 65536, V.QR))
        e('v_add_u32 v%d, %d, v%d' % (V.QR + 2, 131072, V.QR))
        e('s_mov_b32 s%d, 0x%08x' % (S.NL2E, f2u(-LOG2E)))
        e('s_mov_b32 s%d, 0x%08x' % (S.NL2E + 1, f2u(-LOG2E)))
        e('s_mov_b32 s%d, 1.0' % S.ONE2)
        e('s_mov_b32 s%d, 1.0' % (S.ONE2 + 1))

    def act_base(self, sd, vd, vt):
        e = self.e
        L = V.LANE
        e('s_lshl_b32 s%d, s%d, 2' % (sd, S.R))
        e('s_add_u32 s%d, s%d, s%d' % (sd, sd, S.PT))
        e('s_mul_i32 s%d, s%d, %d' % (sd, sd, 2 * ACT_PT))
        e('s_add_u32 s%d, s%d, %d' % (sd, sd, ACT_OFF))
        e('v_bfe_u32 v%d, v%d, 4, 1' % (vd, L))
        e('v_mul_u32_u24 v%d, %d, v%d' % (vd, ACT_PT, vd))
        e('v_lshrrev_b32 v%d, 5, v%d' % (vt, L))
        e('v_lshl_add_u32 v%d, v%d, 8, v%d' % (vd, vt, vd))
        e('v_and_b32 v%d, 15, v%d' % (vt, L))
        e('v_lshl_add_u32 v%d, v%d, 4, v%d' % (vd, vt, vd))

    def resets(self):
        e = self.e
        T = V.HT
        self.act_base(S.T0, T, T + 1)
        for i in range(4):
            e('v_mov_b32 v%d, -1' % (T + 4 + i))
        e('s_mul_i32 s%d, s%d, 1280' % (S.T1, S.C))
        e('s_add_u32 s%d, s%d, s%d' % (S.T0, S.T0, S.T1))
        e('s_add_u32 s%d, s%d, %d' % (S.T0, S.T0, 54 * 1024))
        e('s_lshl_b32 s%d, s%d, 9' % (S.T1, S.FH))
        e('s_add_u32 s%d, s%d, s%d' % (S.T1, S.T1, S.T0))
        e('buffer_store_dwordx4 %s, v%d, %s, s%d offen sc1' % (vr(T + 4, 4), T, srd(SRD_WS), S.T1), 'rst')
        e('v_cmp_gt_u32 vcc, 32, v%d' % V.LANE)
        e('v_cndmask_b32_e64 v%d, %s, v%d, vcc' % (T + 1, BIG, T))
        e('s_cmp_eq_u32 s%d, 0' % S.FH)
        e('s_cselect_b32 s%d, s%d, s%d' % (S.T0, S.T0, BIGS))
        e('buffer_store_dwordx4 %s, v%d, %s, s%d offen offset:1024 sc1' % (vr(T + 4, 4), T + 1, srd(SRD_WS), S.T0), 'rst')
        self.g_addr(S.T0, T + 2)
        e('buffer_store_dwordx4 %s, v%d, %s, s%d offen sc1' % (vr(T + 4, 4), T + 2, srd(SRD_WS), S.T0), 'rst')

    def g_addr(self, sd, vd):
        e = self.e
        e('s_lshl_b32 s%d, s%d, 2' % (sd, S.R))
        e('s_add_u32 s%d, s%d, s%d' % (sd, sd, S.PT))
        e('s_lshl_b32 s%d, s%d, 7' % (sd, sd))
        e('s_add_u32 s%d, s%d, %d' % (sd, sd, G_OFF))
        e('s_or_b32 s%d, s%d, s%d' % (S.T7, S.C, S.FH))
        e('s_cmp_eq_u32 s%d, 0' % S.T7)
        e('s_cselect_b32 s%d, s%d, s%d' % (sd, sd, BIGS))
        if vd is not None:
            e('v_cmp_gt_u32 vcc, 8, v%d' % V.LANE)
            e('v_cndmask_b32_e64 v%d, %s, v%d, vcc' % (vd, BIG, V.L16))

    def h_epilogue(self):
        F = []
        T = V.X
        AV, AT = V.M6, V.M7
        HS = S.T6
        F.append(lambda: self.act_base(HS, AV, AT))

        def soff():
            e = self.e
            e('s_lshl_b32 s%d, s%d, 1' % (S.T7, S.FH))
            e('s_add_u32 s%d, s%d, s%d' % (S.T7, S.T7, S.HK0))
            e('s_lshl_b32 s%d, s%d, 10' % (S.T7, S.T7))
            e('s_add_u32 s%d, s%d, s%d' % (HS, HS, S.T7))
            e('s_cmp_ge_u32 s%d, 11' % S.C)
            e('s_cselect_b32 s%d, s%d, 0' % (S.T7, S.FH))
            e('s_cmp_eq_u32 s%d, 0' % S.T7)
            e('s_cselect_b32 s%d, s%d, s%d' % (HS, HS, BIGS))
        F.append(soff)
        for gq in range(4):
            A = V.ACCH + 8 * gq
            tp = T + 8 * (gq & 1)
            for j in range(8):
                F.append('v_mul_f32 v%d, s%d, v%d' % (tp + j, S.NL2E, A + j))
            for j in range(8):
                F.append('v_exp_f32 v%d, v%d' % (tp + j, tp + j))
                if j >= 2:
                    F.append('v_add_f32 v%d, 1.0, v%d' % (tp + j - 2, tp + j - 2))
            for j in range(8):
                if j < 2:
                    F.append('v_add_f32 v%d, 1.0, v%d' % (tp + 6 + j, tp + 6 + j))
                F.append('v_rcp_f32 v%d, v%d' % (tp + j, tp + j))
                if j >= 2:
                    F.append('v_mul_f32 v%d, v%d, v%d' % (tp + j - 2, tp + j - 2, A + j - 2))
            for j in range(6, 8):
                F.append('v_mul_f32 v%d, v%d, v%d' % (tp + j, tp + j, A + j))
            for j in range(4):
                F.append('v_cvt_pk_bf16_f32 v%d, v%d, v%d' % (A + j, tp + 2 * j, tp + 2 * j + 1))
            F.append(('buffer_store_dwordx4 %s, v%d, %s, s%d offen offset:%d sc1' % (vr(A, 4), AV, srd(SRD_WS), HS, (gq >> 1) * 1024 + (gq & 1) * 512), 'hst'))
        return F

    def h_flag(self, vt):
        a, e = self.a, self.e
        e('s_lshl_b32 s%d, s%d, 2' % (S.T0, S.R))
        e('s_add_u32 s%d, s%d, s%d' % (S.T0, S.T0, S.PT))
        e('s_lshl_b32 s%d, s%d, 4' % (S.T0, S.T0))
        e('s_add_u32 s%d, s%d, s%d' % (S.T0, S.T0, S.C))
        e('s_lshl_b32 s%d, s%d, 1' % (S.T0, S.T0))
        e('s_add_u32 s%d, s%d, s%d' % (S.T0, S.T0, S.FH))
        e('s_lshl_b32 s%d, s%d, 7' % (S.T0, S.T0))
        e('s_add_u32 s%d, s%d, %d' % (S.T0, S.T0, HF_OFF))
        a.wait_vm_tag('hst', 'rst')
        self.flag_store(S.T0, 'hf', vt)

    def emit_fill(self, F, n):
        for _ in range(n):
            if not F:
                return
            x = F.pop(0)
            if callable(x):
                x()
            elif isinstance(x, tuple):
                self.e(x[0], x[1])
            else:
                self.e(x)

    def rd(self, i):
        e = self.e
        if 'r' in self.o.dbg:
            return
        U, kk = i >> 2, i & 3
        A = V.AS + 8 * (i % 3)
        if U < 10:
            sl = (2 * U) % 10
            e('ds_read_b128 %s, v%d offset:%d' % (vr(V.X + 16 * U + 4 * kk, 4), V.XR + 4 * (sl >> 2) + kk, (sl & 3) * 16384))
            sl += 1
            for t in range(2):
                for ii in range(2):
                    e('ds_read_b64_tr_b16 %s, v%d offset:%d' % (vr(A + 4 * t + 2 * ii, 2), V.TR + (sl >> 2), (sl & 3) * 16384 + kk * 4096 + ii * 1024 + t * 256))
        else:
            sl = U - 10
            for t in range(2):
                e('ds_read_b128 %s, v%d offset:%d' % (vr(A + 4 * t, 4), V.QR + (sl >> 2), (sl & 3) * 16384 + kk * 4096 + t * 1024))

    def gap(self, F, D, nd):
        for _ in range(nd):
            if D:
                D.pop(0)()
        budget = self.o.vbud
        while F and budget > 0:
            x = F[0]
            if callable(x):
                cost = 8
            else:
                t = x[0] if isinstance(x, tuple) else x
                cost = 8 if t.startswith(('v_exp', 'v_rcp', 'buffer', 'ds_')) else 4
            if cost > budget:
                break
            budget -= cost
            self.emit_fill(F, 1)

    def mm(self, i, F=None, D=None, nd=(0, 0)):
        U, kk = i >> 2, i & 3
        A = V.AS + 8 * (i % 3)
        acc = V.ACCH if U < 10 else V.ACCQ
        xb = V.X + 16 * (U % 10) + 4 * kk
        for t in range(2):
            c = '0' if i in (0, 40) else vr(acc + 16 * t, 16)
            if 'm' not in self.o.dbg:
                self.e('v_mfma_f32_32x32x16_bf16 %s, %s, %s, %s' % (vr(acc + 16 * t, 16), vr(A + 4 * t, 4), vr(xb, 4), c))
            if F is not None:
                self.gap(F, D, nd[t])

    def hq_pass(self):
        a, e, o = self.a, self.e, self.o
        pre = {u: [] for u in range(21)}
        post = {u: [] for u in range(21)}
        dm = {u: [] for u in range(21)}
        waits = {u: (['x%d' % u, 'w%d' % u] if u < 10 else ['q%d' % (u - 10)]) for u in range(20)}
        waits[20] = []
        A1, A2 = self.a_fill()
        waits[o.afu].append('p0st')
        post[o.afu].append(lambda: self.wg_flag_store(AF_OFF, S.C, S.R, 4, V.HT, 'af'))
        self.add_poll(pre, post, o.apu, o.acu, [V.M7, V.HT + 10], V.M6, AF_OFF, S.C, 16, 'pa')
        waits[o.bfu].append('pbst')
        post[o.bfu].append(lambda: self.wg_flag_store(BF_OFF, S.CB, S.RB, 5, V.HT if o.bfu < 10 else V.X + 8, 'bf'))
        pre[0].append(lambda: e('s_add_u32 s%d, s%d, 1' % (S.TAG, S.TAG)))
        for u in range(o.npre, 4):
            dm[0] += self.load_xw(u)
        dm[1] += self.load_xw(4)
        for u in range(1, 6):
            dm[u] += self.load_xw(u + 4)
        dm[o.bdu] += self.b_load()
        for u in range(10):
            assert o.qu[u] >= max(o.acu, 6 + u // 2) and o.qu[u] < 10 + u and (u != o.bslot or o.qu[u] > o.bpu + 1)
            dm[o.qu[u]] += self.load_q(u)
        assert o.bpu >= 6 + o.bslot // 2 and o.bpu <= 8
        dm[o.bpu + 1] += self.b_store()
        post[o.rstu].append(self.resets)
        self.more_events(pre, post, waits, dm)
        F = []
        D = []
        fills = self.fills()
        if o.astep < 0:
            pre[0].append(lambda: self.emit_fill(A1 + A2, 99))
        for U in range(21):
            if U > 0:
                a.wait_lg(0)
                self.mm(4 * U - 2, F, D, (99, 0))
            assert not D
            for x in pre[U]:
                x()
            if waits[U]:
                a.wait_vm_tag(*waits[U])
            self.stamp('w%d' % U)
            if 'b' not in o.dbg:
                a.barrier()
            self.stamp('b%d' % U)
            for x in post[U]:
                x()
            if U == 20:
                self.mm(79)
                break
            D = list(dm[U])
            npos = 7
            per = [len(D) // npos + (1 if k < len(D) % npos else 0) for k in range(npos)] if len(D) > 4 else None
            if per is None:
                per = [0] * npos
                for k in range(len(D)):
                    per[o.dpos[k]] += 1
            for kk in range(4):
                i = 4 * U + kk
                if i in fills:
                    F += fills[i]
                self.rd(i)
                if i == 4 * o.bpu + o.bws:
                    self.b_write()
                if i == 4 * o.bpu + 4:
                    self.b_read()
                if i == o.astep:
                    self.emit_fill(A1, 7)
                    F += A1 + A2
                if i in (70, 71):
                    for j in range(3 * (i - 70), 3 * (i - 69)):
                        e('ds_read_b128 %s, v0 offset:%d' % (vr(V.WPH + 4 * j, 4), 1024 * j))
                if kk == 0:
                    for _ in range(per[0]):
                        D.pop(0)()
                    if U > 0:
                        self.mm(i - 1, F, D, per[1:3])
                    else:
                        self.gap([], D, per[1] + per[2])
                elif kk >= 2:
                    self.mm(i - 2, F, D, per[2 * kk - 1:2 * kk + 1])
            if True:
                self.stamp('u%d' % U)
        assert not F, len(F)

    def fills(self):
        o = self.o
        f = {}
        f[o.hstep] = self.h_epilogue()
        f[o.hfstep] = [lambda: self.h_flag(V.X + 24)]
        return f

    def p2_setup(self):
        e, o = self.e, self.o
        e('s_mul_i32 s%d, s%d, %d' % (S.WPS, S.CB, 74 * 5120))
        e('s_add_u32 s%d, s%d, %d' % (S.WPS, S.WPS, W2P_OFF))
        e('s_mul_i32 s%d, s%d, %d' % (S.APS, S.RB, 4 * ACT_PT))
        e('s_add_u32 s%d, s%d, %d' % (S.APS, S.APS, ACT_OFF))
        e('s_mul_i32 s%d, s%d, 5120' % (S.W5K, S.W))
        if o.rot2:
            e('s_and_b32 s%d, s%d, 7' % (S.D0, S.RB))
            e('s_and_b32 s%d, s%d, 3' % (S.D1, S.CB))
            e('s_add_u32 s%d, s%d, s%d' % (S.K1, S.D0, S.D1))
            e('s_add_u32 s%d, s%d, s%d' % (S.K0, S.K1, S.D1))
            e('s_sub_u32 s%d, s%d, 7' % (S.D0, S.K0))
            e('s_cselect_b32 s%d, s%d, s%d' % (S.K0, S.K0, S.D0))
            e('s_mul_i32 s%d, s%d, 11' % (S.D0, S.K1))
            e('s_lshr_b32 s%d, s%d, 5' % (S.D0, S.D0))
            e('s_mul_i32 s%d, s%d, 3' % (S.D0, S.D0))
            e('s_sub_u32 s%d, s%d, s%d' % (S.K1, S.K1, S.D0))
            e('s_lshl_b32 s%d, s%d, 3' % (S.K0, S.K0))
            e('s_lshl_b32 s%d, s%d, 3' % (S.K1, S.K1))
            e('s_add_u32 s%d, s%d, s%d' % (S.K0, S.K0, S.W))
            e('s_sub_u32 s%d, s%d, s%d' % (S.K1, S.K1, S.W))
            e('s_add_u32 s%d, s%d, 61' % (S.K1, S.K1))
        else:
            e('s_mov_b32 s%d, s%d' % (S.K0, S.W))
            e('s_sub_u32 s%d, 61, s%d' % (S.K1, S.W))
        e('s_mul_i32 s%d, s%d, 6144' % (S.D0, S.FH))
        e('s_add_u32 s%d, s%d, %d' % (S.D0, S.D0, 5 * 16384))
        e('v_add_u32 v0, s%d, v%d' % (S.D0, V.L16))
        e('s_mul_i32 s%d, s%d, 12288' % (S.WPHS, S.C))
        e('s_add_u32 s%d, s%d, s%d' % (S.WPHS, S.WPHS, S.W2K))
        e('s_add_u32 s%d, s%d, %d' % (S.WPHS, S.WPHS, WPHI_OFF))
        e('s_cmp_lt_u32 s%d, 6' % S.W)
        e('s_cselect_b32 s%d, s%d, s%d' % (S.WPHS, S.WPHS, BIGS))

    def p2_soff(self, i, sd, base, unit):
        e = self.e
        k, ii, lim, per, val = (S.K0, i, 56, 56, 54) if i < 7 else (S.K1, i - 7, 78, 24, 74)
        src = k
        if ii:
            e('s_add_u32 s%d, s%d, %d' % (S.D0, k, 8 * ii))
            e('s_cmp_ge_u32 s%d, %d' % (S.D0, lim))
            e('s_cselect_b32 s%d, %d, 0' % (S.D1, per))
            e('s_sub_u32 s%d, s%d, s%d' % (S.D0, S.D0, S.D1))
            src = S.D0
        e('s_mul_i32 s%d, s%d, %d' % (sd, src, unit))
        e('s_add_u32 s%d, s%d, s%d' % (sd, sd, base))
        e('s_cmp_lt_u32 s%d, %d' % (src, val))
        e('s_cselect_b32 s%d, s%d, s%d' % (sd, sd, BIGS))

    def load_wp(self, i):
        so = S.WRS + (i & 1) * 2
        L = []
        for T in range(5):
            pre = None
            if T == 0:
                def pre(i=i, so=so):
                    self.p2_soff(i, so, S.WPS, 5120)
                    self.e('s_add_u32 s%d, s%d, 4096' % (so + 1, so))
            L.append(self.dma(S.W5K, (i % 3) * 40960 + (4096 if T == 4 else 0), V.L16, SRD_WS, so + (1 if T == 4 else 0), (T & 3) * 1024, 'W%d' % i, sc1=True, pre=pre))
        return L

    def load_act(self, i):
        so = S.ARS + (i & 1)
        L = []
        for tt in range(4):
            def f(tt=tt, i=i, so=so):
                if tt == 0:
                    self.p2_soff(i, so, S.APS, 1024)
                self.e('buffer_load_dwordx4 %s, v%d, %s, s%d offen sc1' % (vr(V.ACTB + 16 * (i & 3) + 4 * tt, 4), V.AV[tt], srd(SRD_WS), so), 'A%d' % i)
            L.append(f)
        return L

    def more_events(self, pre, post, waits, dm):
        o = self.o
        post[7].append(self.p2_setup)
        pv = V.X + 16
        self.add_poll(pre, post, o.bqu, o.bcu, [pv + 1, pv + 2], pv, BF_OFF, S.CB, 32, 'pb')
        dm[16] += [self.dma(S.W2K, 5 * 16384, V.L16, SRD_WS, S.WPHS, 0, 'wph', sc1=True),
                   self.dma(S.W2K, 5 * 16384, V.L16, SRD_WS, S.WPHS, 1024, 'wph', sc1=True)]
        dm[16] = dm[16][-2:] + dm[16][:-2]
        waits[17].append('wph')
        wl = self.load_wp(0) + self.load_wp(1) + self.load_wp(2)
        assert len(o.wu) == 7 and sum(o.wu) == 15
        n = 0
        for k, cnt in enumerate(o.wu):
            for _ in range(cnt):
                assert 13 + k >= max(o.bcu, [13, 15, 18][n // 5])
                dm[13 + k].append(wl[n])
                n += 1
        self.add_poll(pre, post, o.hpu, 20, [pv + 5, pv + 6], pv + 4, HF_OFF, S.RB, 64, 'ph')

    def q_epilogue(self):
        a, e, o = self.a, self.e, self.o
        L = V.LANE
        AQ = V.ACCQ
        B0, B2, B13, R2 = 8, 12, 16, 20
        D0, D1 = 32, 48
        EP, EM, PH = 64, 200, 44
        SCR2 = 131072
        L2E, NL2E = S.L2E, S.NL2E
        T = 24
        e('s_mov_b32 s%d, 0x%08x' % (L2E, f2u(LOG2E)))
        for tt in range(1, 4):
            e('v_add_u32 v%d, %d, v%d' % (V.AV[tt], tt * ACT_PT, V.L16))
        D = []
        for i in range(o.nact0):
            D += self.load_act(i)
        e('s_lshl_b32 s%d, s%d, 14' % (S.T0, S.FH))
        e('s_lshl_b32 s%d, s%d, 12' % (S.T1, S.PT))
        e('s_add_u32 s%d, s%d, s%d' % (S.T0, S.T0, S.T1))
        e('s_add_u32 s%d, s%d, %d' % (S.T0, S.T0, SCR2))
        e('v_bfe_u32 v%d, v%d, 2, 3' % (T, L))
        e('v_lshlrev_b32 v%d, 9, v%d' % (T, T))
        e('v_and_b32 v%d, 3, v%d' % (T + 1, L))
        e('v_lshl_add_u32 v%d, v%d, 6, v%d' % (T, T + 1, T))
        e('v_bfe_u32 v%d, v%d, 2, 2' % (T + 1, L))
        e('v_lshrrev_b32 v%d, 5, v%d' % (T + 2, L))
        e('v_xor_b32 v%d, v%d, v%d' % (T + 1, T + 1, T + 2))
        e('v_lshl_add_u32 v%d, v%d, 4, v%d' % (T, T + 1, T))
        e('v_add_u32 v%d, s%d, v%d' % (T, S.T0, T))
        e('v_xor_b32 v%d, 32, v%d' % (T + 1, T))
        e('v_xor_b32 v%d, 16, v%d' % (T + 2, T))
        e('v_xor_b32 v%d, 48, v%d' % (T + 3, T))
        e('s_mov_b32 vcc_lo, 0')
        e('s_mov_b32 vcc_hi, -1')

        def pk(d, s):
            e('v_cvt_pk_bf16_f32 v%d, v%d, v%d' % (d, s, s + 1))
        for j in range(4):
            pk(B0 + j, AQ + 2 * j)
        for j in range(4):
            pk(B2 + j, AQ + 16 + 2 * j)
        WP = V.WPH

        def mf(d, ai, b, first=False):
            e('v_mfma_f32_32x32x16_bf16 %s, %s, %s, %s' % (vr(d, 16), vr(WP + 4 * ai, 4), vr(b, 4), '0' if first else vr(d, 16)))
        mf(D0, 0, B0, True)
        for j in range(2):
            pk(B13 + j, AQ + 8 + 2 * j)
            pk(B13 + 2 + j, AQ + 24 + 2 * j)
        mf(D1, 3, B0, True)
        for j in range(2):
            pk(R2 + j, AQ + 12 + 2 * j)
            pk(R2 + 2 + j, AQ + 28 + 2 * j)
        mf(D0, 1, B2)
        e('v_mul_f32 v%d, s%d, v%d' % (V.G1, NL2E, AQ + 28))
        e('v_mov_b32 v%d, 0x3f80' % (T + 4))
        e('v_cndmask_b32_e32 v%d, v%d, v%d, vcc' % (R2 + 2, R2 + 2, T + 4))
        e('v_cndmask_b32_e64 v%d, v%d, 0, vcc' % (R2 + 3, R2 + 3))
        mf(D1, 4, B2)
        e('v_exp_f32 v%d, v%d' % (V.G1, V.G1))
        e('ds_write_b128 v%d, %s offset:256' % (T, vr(B13, 4)))
        mf(D0, 2, B13)
        e('ds_write_b128 v%d, %s offset:256' % (T + 1, vr(R2, 4)))
        e('v_add_f32 v%d, 1.0, v%d' % (V.G1, V.G1))
        mf(D1, 5, B13)
        e('v_rcp_f32 v%d, v%d' % (V.G1, V.G1))
        self.g_addr(S.T2, None)
        e('v_lshlrev_b32 v%d, 2, v%d' % (T + 5, L))
        e('v_cndmask_b32_e64 v%d, v%d, %s, vcc' % (T + 5, T + 5, BIG))
        e('v_mov_b32 v%d, v%d' % (T + 4, V.G1))
        e('v_permlane32_swap_b32 v%d, v%d' % (T + 4, V.G1))
        e('buffer_store_dword v%d, v%d, %s, s%d offen sc1' % (V.G1, T + 5, srd(SRD_WS), S.T2), 'gst')
        P = [D0 + i for i in range(16)] + [D1 + i for i in range(4)]
        F = []
        MX, MN = T + 4, T + 5
        for op, M in (('max', MX), ('min', MN)):
            F.append('v_%s3_f32 v%d, v%d, v%d, v%d' % (op, M, P[0], P[1], P[2]))
        for i in range(3, 19, 2):
            for op, M in (('max', MX), ('min', MN)):
                F.append('v_%s3_f32 v%d, v%d, v%d, v%d' % (op, M, M, P[i], P[i + 1]))
        for op, M in (('max', MX), ('min', MN)):
            F.append('v_%s_f32 v%d, v%d, v%d' % (op, M, M, P[19]))
        F.append('v_mul_f32 v%d, s%d, v%d' % (MX, NL2E, MX))
        F.append('v_mul_f32 v%d, s%d, v%d' % (MN, L2E, MN))
        for i in range(20):
            F.append('v_fma_f32 v%d, v%d, s%d, v%d' % (EP + i, P[i], L2E, MX))
            F.append('v_fma_f32 v%d, v%d, s%d, v%d' % (EM + i, P[i], NL2E, MN))
            if i >= 1:
                F.append('v_exp_f32 v%d, v%d' % (EP + i - 1, EP + i - 1))
                F.append('v_exp_f32 v%d, v%d' % (EM + i - 1, EM + i - 1))
            if i == 3:
                F.append('v_add_f32 v%d, v%d, v%d' % (T + 6, EP, EP + 1))
                F.append('v_add_f32 v%d, v%d, v%d' % (T + 7, EM, EM + 1))
            elif i > 3:
                F.append('v_add_f32 v%d, v%d, v%d' % (T + 6, T + 6, EP + i - 2))
                F.append('v_add_f32 v%d, v%d, v%d' % (T + 7, T + 7, EM + i - 2))
        F.append('v_exp_f32 v%d, v%d' % (EP + 19, EP + 19))
        F.append('v_exp_f32 v%d, v%d' % (EM + 19, EM + 19))
        for i in (18, 19):
            F.append('v_add_f32 v%d, v%d, v%d' % (T + 6, T + 6, EP + i))
            F.append('v_add_f32 v%d, v%d, v%d' % (T + 7, T + 7, EM + i))
        F.append('v_rcp_f32 v%d, v%d' % (T + 6, T + 6))
        F.append('v_rcp_f32 v%d, v%d' % (T + 7, T + 7))
        E = [EP + i for i in range(20)] + [EM + i for i in range(20)]
        waddr = [(T, 0), (T + 2, 0), (T + 1, 0), (T + 3, 0), (T, 256)]
        for gq in range(5):
            for j in range(8):
                x = E[8 * gq + j]
                F.append('v_mul_f32 v%d, v%d, v%d' % (x, x, T + 6 if 8 * gq + j < 20 else T + 7))
            for j in range(4):
                F.append('v_cvt_pk_bf16_f32 v%d, v%d, v%d' % (PH + 4 * gq + j, E[8 * gq + 2 * j], E[8 * gq + 2 * j + 1]))

            def wr(gq=gq):
                e('s_mov_b32 exec_hi, 0')
                e('ds_write_b128 v%d, %s offset:%d' % (waddr[gq][0], vr(PH + 4 * gq, 4), waddr[gq][1]))
                e('s_mov_b32 exec_hi, -1')
            F.append(wr)
        n = 0
        while F:
            self.emit_fill(F, 1)
            n += 1
            if D and n % o.actgap == 0:
                D.pop(0)()
        self.run(D)
        for j in range(4):
            e('v_permlane32_swap_b32 v%d, v%d' % (PH + j, PH + 4 + j))
            e('v_permlane32_swap_b32 v%d, v%d' % (PH + 8 + j, PH + 12 + j))
            e('v_cndmask_b32_e64 v%d, 0, v%d, vcc' % (PH + 16 + j, PH + 16 + j))
        a.wait_lg(0)
        a.barrier()
        self.stamp('e2')
        lj = a.newlabel('L_KV')
        e('s_cmp_ge_u32 s%d, 4' % S.W)
        e('s_cbranch_scc1 %s' % lj)
        snap = a.snapshot()
        HH, FT = S.T0, S.T1
        e('s_lshr_b32 s%d, s%d, 1' % (HH, S.W))
        e('s_and_b32 s%d, s%d, 1' % (FT, S.W))
        e('s_lshl_b32 s%d, s%d, 14' % (S.T2, HH))
        e('s_add_u32 s%d, s%d, %d' % (S.T2, S.T2, SCR2))
        e('s_lshl_b32 s%d, s%d, 8' % (S.T3, FT))
        e('s_add_u32 s%d, s%d, s%d' % (S.T3, S.T3, S.T2))
        e('v_lshrrev_b32 v%d, 5, v%d' % (T + 4, L))
        e('v_lshlrev_b32 v%d, 10, v%d' % (T + 5, T + 4))
        e('v_bfe_u32 v%d, v%d, 2, 2' % (T + 6, L))
        e('v_lshl_add_u32 v%d, v%d, 6, v%d' % (T + 5, T + 6, T + 5))
        e('v_and_b32 v%d, 1, v%d' % (T + 6, L))
        e('v_lshl_add_u32 v%d, v%d, 3, v%d' % (T + 5, T + 6, T + 5))
        e('v_bfe_u32 v%d, v%d, 4, 1' % (T + 6, L))
        e('v_bfe_u32 v%d, v%d, 1, 1' % (T + 7, L))
        e('v_lshl_add_u32 v%d, v%d, 1, v%d' % (T + 6, T + 6, T + 7))
        e('v_add_u32 v%d, 1, v%d' % (T + 7, T + 6))
        e('v_and_b32 v%d, 3, v%d' % (T + 7, T + 7))
        e('v_lshlrev_b32 v%d, 1, v%d' % (T + 4, T + 4))
        e('v_xor_b32 v%d, v%d, v%d' % (T + 6, T + 6, T + 4))
        e('v_xor_b32 v%d, v%d, v%d' % (T + 7, T + 7, T + 4))
        e('v_lshl_add_u32 v%d, v%d, 4, v%d' % (T + 6, T + 6, T + 5))
        e('v_lshl_add_u32 v%d, v%d, 4, v%d' % (T + 7, T + 7, T + 5))
        e('v_add_u32 v%d, s%d, v%d' % (T, S.T3, T + 6))
        e('v_add_u32 v%d, s%d, v%d' % (T + 2, S.T2, T + 7))
        e('v_xor_b32 v%d, 16, v%d' % (T + 1, T))
        e('v_xor_b32 v%d, 16, v%d' % (T + 3, T + 2))
        KB = [64, 200]
        KD = 96

        def kr(s):
            b = KB[(s >> 2) & 1] + 8 * (s & 3)
            for i in range(2):
                e('ds_read_b64_tr_b16 %s, v%d offset:%d' % (vr(b + 2 * i, 2), T + i, s * 2048 + i * 512))
            for i in range(2):
                e('ds_read_b64_tr_b16 %s, v%d offset:%d' % (vr(b + 4 + 2 * i, 2), T + 2 + i, s * 2048 + i * 512 + 256))
        for s in range(3):
            kr(s)
        e('s_lshl_b32 s%d, s%d, 4' % (S.T2, S.C))
        e('s_add_u32 s%d, s%d, s%d' % (S.T2, S.T2, S.R))
        e('s_mul_i32 s%d, s%d, %d' % (S.T2, S.T2, KVP_STRIDE))
        e('s_mul_i32 s%d, s%d, 1680' % (S.T3, HH))
        e('s_add_u32 s%d, s%d, s%d' % (S.T2, S.T2, S.T3))
        e('s_mul_i32 s%d, s%d, 1344' % (S.T3, FT))
        e('s_add_u32 s%d, s%d, s%d' % (S.T2, S.T2, S.T3))
        e('s_add_u32 s%d, s%d, %d' % (S.T2, S.T2, KVP_OFF))
        e('s_cmp_eq_u32 s%d, 0' % FT)
        e('s_cselect_b32 s%d, s%d, s%d' % (S.T3, S.T2, BIGS))
        e('s_mov_b32 vcc_lo, 0x1fffff')
        e('s_cselect_b32 vcc_hi, 0x1fffff, 0')
        e('v_and_b32 v%d, 31, v%d' % (T + 4, L))
        e('v_lshrrev_b32 v%d, 5, v%d' % (T + 5, L))
        e('v_mul_u32_u24 v%d, 21, v%d' % (T + 5, T + 5))
        e('v_add_lshl_u32 v%d, v%d, v%d, 4' % (T + 4, T + 4, T + 5))
        e('v_cndmask_b32_e64 v%d, %s, v%d, vcc' % (T + 4, BIG, T + 4))
        for s in range(8):
            if s + 3 < 8:
                kr(s + 3)
            b = KB[(s >> 2) & 1] + 8 * (s & 3)
            e('v_mfma_f32_32x32x16_bf16 %s, %s, %s, %s' % (vr(KD, 16), vr(b, 4), vr(b + 4, 4), '0' if s == 0 else vr(KD, 16)))
        KP = 64
        for j in range(8):
            pk(KP + j, KD + 2 * j)
        for h in range(2):
            for j in range(2):
                e('v_permlane32_swap_b32 v%d, v%d' % (KP + 4 * h + j, KP + 4 * h + 2 + j))
            e('buffer_store_dwordx4 %s, v%d, %s, s%d offen offset:%d sc1' % (vr(KP + 4 * h, 4), T + 4, srd(SRD_WS), S.T3 if h else S.T2, 672 * h), 'kvst')
        end = a.snapshot()
        a.label(lj)
        a.merge(snap, end)
        self.stamp('kv')

    def retry(self, chk, reload, maxit=2000):
        a, e = self.a, self.e
        lo, ld = a.newlabel('L_RL'), a.newlabel('L_RD')
        chk()
        e('s_mov_b32 s%d, %d' % (S.CNT, maxit))
        e('s_cbranch_vccz %s' % ld)
        snap = a.snapshot()
        a.label(lo)
        e('s_sleep %d' % self.o.rsleep)
        reload()
        a.wait_vm(0)
        e('s_sub_u32 s%d, s%d, 1' % (S.CNT, S.CNT))
        e('s_cmp_eq_u32 s%d, 0' % S.CNT)
        e('s_cbranch_scc1 %s' % ld)
        chk()
        e('s_cbranch_vccnz %s' % lo)
        end = a.snapshot()
        a.label(ld)
        a.merge(snap, end)

    def chk_regs(self, regs, t):
        e = self.e
        regs = list(regs)
        if len(regs) == 1:
            e('v_cmp_eq_u32 vcc, -1, v%d' % regs[0])
            return
        if len(regs) % 2 == 0:
            e('v_max_u32 v%d, v%d, v%d' % (t, regs[0], regs[1]))
            regs = regs[2:]
        else:
            e('v_max3_u32 v%d, v%d, v%d, v%d' % (t, regs[0], regs[1], regs[2]))
            regs = regs[3:]
        while regs:
            e('v_max3_u32 v%d, v%d, v%d, v%d' % (t, t, regs[0], regs[1]))
            regs = regs[2:]
        e('v_cmp_eq_u32 vcc, -1, v%d' % t)

    KL, SM, OD = 64, 96, 96
    SAREA = 122880

    def kv_loads(self):
        L = []
        KA = 53

        def first():
            e = self.e
            e('s_lshr_b32 s%d, s%d, 2' % (S.KVS, S.W))
            e('s_lshl_b32 s%d, s%d, 3' % (S.KVS, S.KVS))
            e('s_lshl_b32 s%d, s%d, 4' % (S.D0, S.C))
            e('s_add_u32 s%d, s%d, s%d' % (S.KVS, S.KVS, S.D0))
            e('s_mul_i32 s%d, s%d, %d' % (S.KVS, S.KVS, KVP_STRIDE))
            e('s_add_u32 s%d, s%d, %d' % (S.KVS, S.KVS, KVP_OFF))
            e('s_lshl_b32 s%d, s%d, 10' % (S.D0, S.PT))
            e('v_add_u32 v%d, s%d, v%d' % (KA, S.D0, V.L16))
            e('v_cmp_gt_u32 vcc, %d, v%d' % (3360, KA))
            e('v_cndmask_b32_e64 v%d, %s, v%d, vcc' % (KA, BIG, KA))
        for j in range(8):
            def f(j=j):
                if j == 0:
                    first()
                self.kv_load1(j)
            L.append(f)
        return L

    def kv_load1(self, j):
        e = self.e
        e('s_add_u32 s%d, s%d, %d' % (S.D0, S.KVS, j * KVP_STRIDE))
        e('buffer_load_dwordx4 %s, v53, %s, s%d offen sc1' % (vr(self.KL + 4 * j, 4), srd(SRD_WS), S.D0), 'kvl')

    def o_stage(self):
        a, e, o = self.a, self.e, self.o
        L = V.LANE
        KL, SM, OD = self.KL, self.SM, self.OD
        T = 104
        e('v_bfe_u32 v%d, v%d, 3, 1' % (T, L))
        e('v_and_b32 v%d, 3, v%d' % (T + 1, L))
        e('v_lshl_add_u32 v%d, v%d, 2, v%d' % (T, T, T + 1))
        e('v_and_b32 v%d, 16, v%d' % (T + 1, L))
        e('v_add_u32 v%d, v%d, v%d' % (T, T, T + 1))
        e('v_bfe_u32 v%d, v%d, 2, 1' % (T + 1, L))
        e('v_lshl_add_u32 v%d, v%d, 3, v%d' % (T, T + 1, T))
        e('v_min_u32 v%d, 20, v%d' % (T, T))
        e('s_mul_i32 s%d, s%d, 1680' % (S.T0, S.FH))
        e('s_add_u32 s%d, s%d, %d' % (S.T0, S.T0, self.SAREA))
        e('v_lshlrev_b32 v%d, 4, v%d' % (T, T))
        e('v_add_u32 v%d, s%d, v%d' % (54, S.T0, T))
        e('v_lshrrev_b32 v%d, 5, v%d' % (T + 1, L))
        e('v_mul_u32_u24 v%d, 336, v%d' % (T + 1, T + 1))
        e('v_add_u32 v%d, v%d, v%d' % (55, 54, T + 1))
        e('s_lshl_b32 s%d, s%d, 10' % (S.T0, S.W))
        e('s_add_u32 s%d, s%d, %d' % (S.T0, S.T0, self.SAREA))
        e('v_add_u32 v%d, s%d, v%d' % (T + 1, S.T0, V.L16))
        e('s_mov_b32 s%d, 0x3f80' % S.T1)
        e('s_mov_b32 s%d, 0x3f800000' % S.T2)
        self.stamp('os0')
        self.retry(lambda: self.chk_regs([KL + 4 * j for j in range(8)], T), lambda: [self.kv_load1(j) for j in range(8)])
        self.stamp('os1')
        for j in range(8):
            for d in range(4):
                for h in range(2):
                    e('v_dot2_f32_bf16 v%d, v%d, s%d, %s' % (SM + 2 * d + h, KL + 4 * j + d, S.T1 + h, '0' if j == 0 else 'v%d' % (SM + 2 * d + h)))
        for d in range(4):
            e('v_cvt_pk_bf16_f32 v%d, v%d, v%d' % (KL + d, SM + 2 * d, SM + 2 * d + 1))
        e('ds_write_b128 v%d, %s' % (T + 1, vr(KL, 4)))
        a.wait_lg(0)
        a.barrier()
        self.stamp('os2')
        AF = 64
        for hf in range(2):
            for s in range(3):
                e('ds_read_b128 %s, v%d offset:%d' % (vr(AF + 12 * hf + 4 * s, 4), 55 if s < 2 else 54, hf * 4096 + (672 * s if s < 2 else 1344)))
        self.act_base(S.T0, 88, 89)
        e('s_mul_i32 s%d, s%d, 1280' % (S.T1, S.C))
        e('s_add_u32 s%d, s%d, s%d' % (S.T0, S.T0, S.T1))
        e('s_add_u32 s%d, s%d, %d' % (S.T0, S.T0, 54 * 1024))
        e('s_lshl_b32 s%d, s%d, 9' % (S.T1, S.FH))
        e('s_add_u32 s%d, s%d, s%d' % (S.T1, S.T1, S.T0))
        e('s_lshl_b32 s%d, s%d, 3' % (S.T2, S.FH))
        e('s_add_u32 s%d, s%d, s%d' % (S.T0, S.T0, S.T2))
        e('v_cmp_gt_u32 vcc, 32, v%d' % L)
        e('v_cndmask_b32_e64 v89, %s, v88, vcc' % BIG)
        PQ = [48, 56, 60]
        n = 0
        for hf in range(2):
            for s in range(3):
                e('v_mfma_f32_32x32x16_bf16 %s, %s, %s, %s' % (vr(OD, 16), vr(AF + 12 * hf + 4 * s, 4), vr(PQ[s], 4), '0' if n == 0 else vr(OD, 16)))
                n += 1
        a.wait_lg(0)
        a.barrier()
        e('v_add_f32 v90, 0x%08x, v%d' % (f2u(1e-6), OD + 12))
        e('v_rcp_f32 v90, v90')
        e('v_mul_f32 v90, v90, v%d' % V.G1)
        for j in range(12):
            e('v_mul_f32 v%d, v%d, v90' % (OD + j, OD + j))
        for j in range(6):
            e('v_cvt_pk_bf16_f32 v%d, v%d, v%d' % (AF + j, OD + 2 * j, OD + 2 * j + 1))
        e('buffer_store_dwordx4 %s, v88, %s, s%d offen sc1' % (vr(AF, 4), srd(SRD_WS), S.T1), 'ost')
        e('buffer_store_dwordx2 %s, v89, %s, s%d offen offset:1024 sc1' % (vr(AF + 4, 2), srd(SRD_WS), S.T0), 'ost')

    G4 = 72

    def g_loads(self):
        e = self.e
        e('s_lshl_b32 s%d, s%d, 8' % (S.KVS, S.RB))
        e('s_add_u32 s%d, s%d, %d' % (S.KVS, S.KVS, G_OFF))
        e('v_and_b32 v53, 15, v%d' % V.LANE)
        e('v_lshlrev_b32 v53, 2, v53')
        self.g_load1()

    def g_load1(self):
        for tt in range(4):
            self.e('buffer_load_dword v%d, v53, %s, s%d offen offset:%d sc1' % (self.G4 + tt, srd(SRD_WS), S.KVS, 64 * tt), 'gl')

    def wp_read(self, i):
        L = [lambda: self.a.wait_vm_tag('W%d' % i)]
        for T in range(5):
            L.append('ds_read_b128 %s, v%d offset:%d' % (vr(V.WB + 20 * (i & 1) + 4 * T, 4), V.M7 if i % 3 < 2 else 0, (i % 3 & 1) * 40960 + 1024 * T))
        return L

    def phase2(self):
        a, e, o = self.a, self.e, self.o
        NR = 10
        e('v_add_u32 v%d, s%d, v%d' % (V.M7, S.W5K, V.L16))
        e('v_add_u32 v0, %d, v%d' % (81920, V.M7))
        self.emit_fill(self.wp_read(0), 99)
        issue_act = {}
        for i in range(o.nact0, NR):
            issue_act.setdefault(i - 4 if i < 7 else max(i - o.olag, i - 4), []).append(i)
        for i in range(NR):
            if i >= 7:
                regs = [V.ACTB + 16 * (i & 3) + 4 * tt + d for tt in range(4) for d in (0, 2)]
                self.retry(lambda: self.chk_regs(regs, 76), lambda: self.run(self.load_act(i)))
                self.stamp('c%d' % i)
            F = []
            if i + 3 < NR:
                F += self.load_wp(i + 3)
            if i + 1 < NR:
                F += self.wp_read(i + 1)
            if i == o.kvr:
                F += self.kv_loads()
            if i == o.gr:
                F.append(self.g_loads)
            A = []
            for j in issue_act.get(i, []):
                A.append((j, self.load_act(j)))
            for j, la in A:
                if j - 4 != i:
                    F += la
            for tt in range(4):
                for T in range(5):
                    acc = vr(V.ACC2 + 20 * tt + 4 * T, 4)
                    e('v_mfma_f32_16x16x32_bf16 %s, %s, %s, %s' % (acc, vr(V.WB + 20 * (i & 1) + 4 * T, 4), vr(V.ACTB + 16 * (i & 3) + 4 * tt, 4), '0' if i == 0 else acc))
                    self.emit_fill(F, 1)
                for j, la in A:
                    if j - 4 == i:
                        la[tt]()
            self.emit_fill(F, 99)
            if i == o.ors:
                self.o_stage()
                if o.stop == 'o':
                    return
            if i == 6:
                G4 = self.G4
                self.retry(lambda: self.chk_regs([G4 + tt for tt in range(4)], 76), self.g_load1)
                for tt in range(4):
                    e('v_sub_f32 v%d, 1.0, v%d' % (G4 + tt, G4 + tt))
                for tt in range(4):
                    for j in range(20):
                        e('v_mul_f32 v%d, v%d, v%d' % (V.ACC2 + 20 * tt + j, V.ACC2 + 20 * tt + j, G4 + tt))
            if True:
                self.stamp('r%d' % i)
        L = V.LANE
        T = 64
        e('v_and_b32 v%d, 15, v%d' % (T, L))
        e('v_lshrrev_b32 v%d, 5, v%d' % (T + 1, L))
        e('v_xor_b32 v%d, v%d, v%d' % (T, T, T + 1))
        e('v_lshlrev_b32 v%d, 4, v%d' % (T, T))
        e('v_lshrrev_b32 v%d, 4, v%d' % (T + 1, L))
        e('v_lshl_add_u32 v%d, v%d, 8, v%d' % (T, T + 1, T))
        e('v_add_u32 v%d, s%d, v%d' % (T, S.W5K, T))
        for t in range(1, 5):
            e('v_xor_b32 v%d, %d, v%d' % (T + t, t << 5, T))
        for t in range(5):
            e('v_add_u32 v%d, %d, v%d' % (T + 5 + t, 81920, T + t))
        for tt in range(4):
            for t in range(5):
                e('ds_write_b128 v%d, %s offset:%d' % (T + 5 * (tt >> 1) + t, vr(V.ACC2 + 20 * tt + 4 * t, 4), (tt & 1) * 40960 + t * 1024))
        R = 80
        e('s_lshr_b32 s%d, s%d, 1' % (S.T0, S.W))
        e('s_mul_i32 s%d, s%d, 40960' % (S.T0, S.T0))
        e('s_and_b32 s%d, s%d, 1' % (S.T1, S.W))
        e('s_lshl_b32 s%d, s%d, 3' % (S.T1, S.T1))
        e('s_lshl_b32 s%d, s%d, 3' % (S.T2, S.RB))
        e('s_add_u32 s%d, s%d, s%d' % (S.T2, S.T2, S.W))
        e('s_mul_i32 s%d, s%d, %d' % (S.T2, S.T2, 8 * 1280))
        e('s_mul_i32 s%d, s%d, 160' % (S.T3, S.CB))
        e('s_add_u32 s%d, s%d, s%d' % (S.T2, S.T2, S.T3))
        for p in range(2):
            ix, row, c10, la, ga = R + 8 * p, R + 8 * p + 1, R + 8 * p + 2, R + 8 * p + 3, R + 8 * p + 4
            if p == 0:
                e('v_mov_b32 v%d, v%d' % (ix, L))
            else:
                e('v_and_b32 v%d, 15, v%d' % (ix, L))
                e('v_add_u32 v%d, 64, v%d' % (ix, ix))
            e('v_mul_u32_u24 v%d, 205, v%d' % (row, ix))
            e('v_lshrrev_b32 v%d, 11, v%d' % (row, row))
            e('v_mul_u32_u24 v%d, 10, v%d' % (c10, row))
            e('v_sub_u32 v%d, v%d, v%d' % (c10, ix, c10))
            e('v_mul_u32_u24 v%d, 1280, v%d' % (ga, row))
            e('v_lshl_add_u32 v%d, v%d, 4, v%d' % (ga, c10, ga))
            e('v_add_u32 v%d, s%d, v%d' % (row, S.T1, row))
            e('v_xor_b32 v%d, v%d, v%d' % (row, row, c10))
            e('v_lshlrev_b32 v%d, 9, v%d' % (la, c10))
            e('v_lshl_add_u32 v%d, v%d, 4, v%d' % (la, row, la))
            e('v_add_u32 v%d, s%d, v%d' % (la, S.T0, la))
            if p == 1:
                e('v_cmp_gt_u32 vcc, 16, v%d' % L)
                e('v_cndmask_b32_e64 v%d, %s, v%d, vcc' % (ga, BIG, ga))
        a.wait_lg(0)
        a.barrier()
        self.stamp('red')
        RB_ = [112, 176]
        for p in range(2):
            la = R + 8 * p + 3
            if p == 1:
                e('s_mov_b64 exec, 0xffff')
            for sw in range(8):
                for q in range(2):
                    e('ds_read_b128 %s, v%d offset:%d' % (vr(RB_[p] + 8 * sw + 4 * q, 4), la, sw * 5120 + q * 256))
            if p == 1:
                e('s_mov_b64 exec, -1')
        for p in range(2):
            b = RB_[p]
            for st in (1, 2, 4):
                for sw in range(0, 8, 2 * st):
                    for j in range(8):
                        e('v_add_f32 v%d, v%d, v%d' % (b + 8 * sw + j, b + 8 * sw + j, b + 8 * (sw + st) + j))
            for j in range(4):
                e('v_cvt_pk_bf16_f32 v%d, v%d, v%d' % (b + j, b + 2 * j, b + 2 * j + 1))
            e('buffer_store_dwordx4 %s, v%d, %s, s%d offen' % (vr(b, 4), R + 8 * p + 4, srd(SRD_OUT), S.T2), 'out')

    def epilogue_end(self):
        a, e, o = self.a, self.e, self.o
        if o.stamps:
            self.stamp('end')
            a.wait_lg(0)
            n = self.nstamp
            e('s_lshl_b32 s%d, s2, 3' % S.T0)
            e('s_add_u32 s%d, s%d, s%d' % (S.T0, S.T0, S.W))
            e('s_mul_i32 s%d, s%d, 64' % (S.T0, S.T0))
            e('s_add_u32 s%d, s%d, %d' % (S.T0, S.T0, STAMP_OFF))
            e('v_cmp_eq_u32 vcc, 0, v%d' % V.LANE)
            e('v_cndmask_b32_e64 v10, %s, 0, vcc' % BIG)
            for j in range(n):
                e('v_mov_b32 v8, s%d' % (S.STAMP + 2 * j))
                e('v_mov_b32 v9, s%d' % (S.STAMP + 2 * j + 1))
                e('buffer_store_dwordx2 v[8:9], v10, %s, s%d offen offset:%d' % (srd(SRD_WS), S.T0, 8 * j))
                e('s_nop 1')
        a.wait_vm(0)
        a.label('L_END')
        e('s_endpgm')
        a.label('L_CODE_END')

    def build(self):
        a, o = self.a, self.o
        a.raw('; @launch grid=(256,1,1) block=(512,1,1) lds=163840')
        a.raw('.amdgcn_target "amdgcn-amd-amdhsa--gfx950"')
        a.raw('.text')
        a.raw('.globl %s' % KLABEL)
        a.raw('.p2align 8')
        a.raw('.type %s,@function' % KLABEL)
        a.label(KLABEL)
        self.body()
        self.epilogue_end()
        a.raw('.section .rodata,"a"')
        a.raw('.p2align 6')
        a.raw('.amdhsa_kernel %s' % KLABEL)
        a.raw('  .amdhsa_next_free_vgpr 256')
        a.raw('  .amdhsa_next_free_sgpr 102')
        a.raw('  .amdhsa_accum_offset 256')
        a.raw('  .amdhsa_group_segment_fixed_size 0')
        a.raw('  .amdhsa_kernarg_size 88')
        a.raw('  .amdhsa_user_sgpr_count 2')
        a.raw('  .amdhsa_user_sgpr_kernarg_segment_ptr 1')
        a.raw('  .amdhsa_system_sgpr_workgroup_id_x 1')
        a.raw('.end_amdhsa_kernel')
        assert a.maxv <= 256 and a.maxs <= 102, (a.maxv, a.maxs)
        return a.text()

    def body(self):
        a, e, o = self.a, self.e, self.o
        self.prologue()
        self.phase0()
        self.hq_setup()
        self.stamp('h0')
        self.hq_pass()
        self.stamp('qend')
        if o.stop == 'h':
            a.wait_vm(0)
            self.epoch_store()
            return
        self.q_epilogue()
        if o.stop == 'q':
            a.wait_vm(0)
            self.epoch_store()
            return
        self.phase2()
        self.epoch_store()

    def epoch_store(self):
        e = self.e
        e('s_or_b32 s%d, s2, s%d' % (S.T0, S.W))
        e('s_cmp_eq_u32 s%d, 0' % S.T0)
        e('s_cselect_b32 s%d, %d, s%d' % (S.T0, EPOCH_OFF, BIGS))
        self.flag_store(S.T0, 'ep', 8)


def main():
    ap = argparse.ArgumentParser()
    ap.add_argument('-o', default='k.s')
    ap.add_argument('--stop', default='')
    ap.add_argument('--stamps', type=int, default=0)
    ap.add_argument('--rot', type=int, default=1)
    ap.add_argument('--rot2', type=int, default=0)
    ap.add_argument('--codepf', type=int, default=1)
    ap.add_argument('--nfirst', type=int, default=2)
    ap.add_argument('--psleep', type=int, default=8)
    ap.add_argument('--stu', type=lambda s: [int(x) for x in s.split(',')], default=[0, 9])
    ap.add_argument('--dbg', default='')
    ap.add_argument('--afu', type=int, default=2)
    ap.add_argument('--apu', type=lambda s: [int(x) for x in s.split(',')], default=[5, 6])
    ap.add_argument('--pw', type=int, default=3)
    ap.add_argument('--acu', type=int, default=7)
    ap.add_argument('--astep', type=int, default=3)
    ap.add_argument('--bslot', type=int, default=5)
    ap.add_argument('--bws', type=int, default=1)
    ap.add_argument('--qu', type=lambda s: [int(x) for x in s.split(',')], default=[7, 8, 9, 10, 11, 12, 13, 14, 15, 16])
    ap.add_argument('--breg', type=int, default=240)
    ap.add_argument('--bdu', type=int, default=6)
    ap.add_argument('--bpu', type=int, default=8)
    ap.add_argument('--bfu', type=int, default=11)
    ap.add_argument('--bqu', type=lambda s: [int(x) for x in s.split(',')], default=[12, 13])
    ap.add_argument('--bcu', type=int, default=14)
    ap.add_argument('--qmax', type=int, default=3)
    ap.add_argument('--wu', type=lambda s: [int(x) for x in s.split(',')], default=[0, 3, 3, 1, 3, 3, 2])
    ap.add_argument('--hstep', type=int, default=46)
    ap.add_argument('--rstu', type=int, default=7)
    ap.add_argument('--hpu', type=lambda s: [int(x) for x in s.split(',')], default=[19])
    ap.add_argument('--nact0', type=int, default=4)
    ap.add_argument('--actgap', type=int, default=10)
    ap.add_argument('--str', dest='str_', type=lambda s: [int(x) for x in s.split(',')], default=[])
    ap.add_argument('--rsleep', type=int, default=4)
    ap.add_argument('--olag', type=int, default=2)
    ap.add_argument('--kvr', type=int, default=2)
    ap.add_argument('--ors', type=int, default=3)
    ap.add_argument('--gr', type=int, default=5)
    ap.add_argument('--st', type=lambda s: s.split(','), default='start,u0,u9,qend,e2,r3,red,end'.split(','))
    ap.add_argument('--vbud', type=int, default=20)
    ap.add_argument('--npre', type=int, default=2)
    ap.add_argument('--dpos', type=lambda s: [int(x) for x in s.split(',')], default=[0, 2, 4, 6])
    ap.add_argument('--hfstep', type=int, default=74)
    ap.add_argument('--p0bar', type=int, default=1)
    o = ap.parse_args()
    g = Gen(o)
    t = g.build()
    open(o.o, 'w').write(t)
    print('instructions', g.a.stats, 'maxv', g.a.maxv, 'maxs', g.a.maxs, file=sys.stderr)


if __name__ == '__main__':
    main()
```

```python
import sys, argparse
from asmfw import Asm

NAME = 'gated_mix__linear_kernel_hedgehog__dense_activation_silu__prompt'
KLABEL = NAME + '_kernel'

EPOCH_OFF = 0x0
WQ_OFF = 0x1000
WPHI_OFF = 0x290000
W2P_OFF = 0x300000
ACT_OFF = 0x600000
KVP_OFF = 0x1000000
KVP_STRIDE = 3584
G_OFF = 0x1100000
AF_OFF = 0x1110000
BF_OFF = 0x1118000
HF_OFF = 0x1120000
DUMP_OFF = 0x2000000
STAMP_OFF = 200 << 20
ACT_PT = 74 * 1024
BIG = '2.0'
BIGV = 0x40000000
LOG2E = 1.4426950408889634

SRD_X, SRD_W1, SRD_WS, SRD_WQKV, SRD_W2O, SRD_WPHI, SRD_GW, SRD_DBG, SRD_OUT = 4, 8, 12, 16, 20, 24, 28, 32, 36
SRD_CODE = 36
SRD_CODE = 52


BIGS = 101


def f2u(x):
    import struct
    return struct.unpack('<I', struct.pack('<f', x))[0]


def srd(n):
    return 's[%d:%d]' % (n, n + 3)


def vr(a, n=1):
    return 'v%d' % a if n == 1 else 'v[%d:%d]' % (a, a + n - 1)


def sr(a, n=1):
    return 's%d' % a if n == 1 else 's[%d:%d]' % (a, a + n - 1)


class S:
    W, R, C, RB, CB, PT, FH, W2K = 62, 63, 64, 65, 66, 67, 68, 69
    ST, XS, WS, QS, QST = 70, 71, 72, 73, 74
    HK0 = 75
    CNT = 76
    KQ, P32 = 77, 78
    TAG = 100
    WS4 = 30
    D0, D1 = 98, 99
    PS = 31
    NL2E, ONE2 = 32, 34
    WPS, APS, W5K, WPHS, L2E = 16, 17, 18, 19, 20
    WRS, ARS = 22, 26
    KVS = 28
    T0, T1, T2, T3, T4, T5, T6, T7 = 40, 41, 42, 43, 44, 45, 46, 47
    M0, M1, M2, M3 = 48, 50, 52, 54
    STAMP = 80


class V:
    LANE, L16 = 1, 2
    QR = 3
    M6, M7 = 6, 7
    AS = 8
    ACCH = 32
    ACCQ = 64
    X = 96
    XO0, XO1, WO0, WO1 = 64, 65, 66, 67
    XR = 68
    TR = 80
    HT = 84
    WPH = 176
    G1 = 6
    AV = [2, 3, 4, 5]
    ACTB = 112
    ACC2 = 176
    WB = 8


class Gen:
    def __init__(self, opt):
        self.o = opt
        self.a = Asm()
        self.nstamp = 0

    def e(self, t, tag=None):
        return self.a.e(t, tag)

    def stamp(self, name):
        if self.o.stamps and name in self.o.st:
            assert self.nstamp < 8
            self.e('%s %s' % ('s_memtime' if self.o.stamps == 2 else 's_memrealtime', sr(S.STAMP + 2 * self.nstamp, 2)))
            self.nstamp += 1

    def csel(self, d, x, y):
        self.e('s_mov_b32 s%d, %s' % (d, y))
        self.e('s_cmov_b32 s%d, %s' % (d, x))

    def mk_srd(self, n, ptr, size):
        e = self.e
        e('s_mov_b32 s%d, s%d' % (n, ptr))
        e('s_mov_b32 s%d, s%d' % (n + 1, ptr + 1))
        e('s_mov_b32 s%d, %d' % (n + 2, size))
        e('s_mov_b32 s%d, 0x00020000' % (n + 3))

    def dma(self, m0base, m0off, voff, sr_, so, imm, tag, sc1=False, pre=None, post=None):
        def f():
            if pre:
                pre()
            self.e('s_add_u32 m0, s%d, %d' % (m0base, m0off))
            self.e('buffer_load_dwordx4 v%d, %s, s%d offen%s%s lds' % (voff, srd(sr_), so, ' offset:%d' % imm if imm else '', ' sc1' if sc1 else ''), tag)
            if post:
                post()
        return f

    def load_x(self, slot, tag, post=None):
        return [self.dma(S.W2K, slot * 16384, V.XO0, SRD_X, S.XS, 0, tag),
                self.dma(S.W2K, slot * 16384, V.XO1, SRD_X, S.XS, 1024, tag, post=post)]

    def load_w(self, slot, tag, so=None, post=None):
        so = S.WS if so is None else so
        return [self.dma(S.W2K, slot * 16384, V.WO0, SRD_W1, so, 0, tag),
                self.dma(S.W2K, slot * 16384, V.WO1, SRD_W1, so, 1024, tag, post=post)]

    def adv_xw(self):
        e = self.e
        t0, t1 = S.D0, S.D1
        e('s_add_u32 s%d, s%d, 1' % (S.ST, S.ST))
        e('s_cmp_eq_u32 s%d, 10' % S.ST)
        self.csel(t0, 128 - 1280, 128)
        self.csel(t1, 221184 - 2211840, 221184)
        e('s_cselect_b32 s%d, 0, s%d' % (S.ST, S.ST))
        e('s_add_u32 s%d, s%d, s%d' % (S.XS, S.XS, t0))
        e('s_add_u32 s%d, s%d, s%d' % (S.WS, S.WS, t1))

    def load_xw(self, u):
        adv = self.adv_xw if u < 9 else None
        if u == 4:
            def p():
                self.e('s_mov_b32 s%d, s%d' % (S.WS4, S.WS))
                self.adv_xw()
            return self.load_x(8, 'x4', post=p)
        return self.load_x((2 * u) % 10, 'x%d' % u) + self.load_w((2 * u + 1) % 10, 'w%d' % u, post=adv)

    def load_q(self, u):
        def adv():
            e = self.e
            e('s_add_u32 s%d, s%d, 1' % (S.QST, S.QST))
            e('s_cmp_eq_u32 s%d, 10' % S.QST)
            self.csel(S.D0, 16384 - 163840, 16384)
            e('s_cselect_b32 s%d, 0, s%d' % (S.QST, S.QST))
            e('s_add_u32 s%d, s%d, s%d' % (S.QS, S.QS, S.D0))
        return [self.dma(S.W2K, u * 16384, V.L16, SRD_WS, S.QS, 0, 'q%d' % u, sc1=True),
                self.dma(S.W2K, u * 16384, V.L16, SRD_WS, S.QS, 1024, 'q%d' % u, sc1=True, post=adv if u < 9 else None)]

    def run(self, lst):
        for f in lst:
            f()

    def prologue(self):
        a, e, o = self.a, self.e, self.o
        L = V.LANE
        e('s_cmp_ge_u32 s2, 256')
        e('s_cbranch_scc1 L_END')
        e('s_load_dwordx16 s[40:55], s[0:1], 0')
        e('s_load_dwordx4 s[56:59], s[0:1], 64')
        e('s_load_dwordx2 s[60:61], s[0:1], 80')
        self.stamp('start')
        e('v_lshrrev_b32 v3, 6, v0')
        e('v_and_b32 v%d, 63, v0' % V.LANE)
        e('v_readfirstlane_b32 s%d, v3' % S.W)
        e('v_lshlrev_b32 v%d, 4, v%d' % (V.L16, V.LANE))
        t0, t1, t2, t3 = 79, S.CNT, S.KQ, S.P32
        e('s_and_b32 s%d, s2, 7' % t0)
        e('s_bfe_u32 s%d, s2, 0x30003' % t2)
        e('s_lshr_b32 s%d, s2, 6' % t3)
        e('s_and_b32 s%d, s%d, 4' % (S.CB, t0))
        e('s_add_u32 s%d, s%d, s%d' % (S.CB, S.CB, t3))
        e('s_and_b32 s%d, s%d, 3' % (S.RB, t0))
        e('s_lshl_b32 s%d, s%d, 3' % (S.RB, S.RB))
        e('s_add_u32 s%d, s%d, s%d' % (S.RB, S.RB, t2))
        e('s_and_b32 s%d, s%d, 15' % (S.R, S.RB))
        e('s_and_b32 s%d, s%d, 6' % (S.C, t0))
        e('s_lshl_b32 s%d, s%d, 1' % (S.C, S.C))
        e('s_add_u32 s%d, s%d, s%d' % (S.C, S.C, t3))
        e('s_lshl_b32 s%d, s%d, 11' % (S.W2K, S.W))
        e('s_mov_b32 s%d, %d' % (BIGS, BIGV))
        SCR = self.SCR = 8 * 16384
        T = self.T = V.X + 70
        e('v_and_b32 v%d, 3, v%d' % (T + 9, L))
        e('s_cmp_ge_u32 s%d, 3' % S.W)
        e('s_cbranch_scc1 L_ROLEA')
        snap = a.snapshot()
        KS = self.KS = 79
        e('s_lshl_b32 s%d, s%d, 5' % (KS, S.W))
        e('s_add_u32 s%d, s%d, s%d' % (KS, KS, S.RB))
        e('s_sub_u32 s%d, s%d, 54' % (t1, KS))
        e('s_cmp_ge_u32 s%d, 54' % KS)
        e('s_cselect_b32 s%d, s%d, s%d' % (t1, t1, KS))
        e('s_cselect_b32 s%d, 1, 0' % t2)
        e('s_lshl_b32 s%d, s%d, 2' % (t1, t1))
        e('v_add_u32 v%d, s%d, v%d' % (T, t1, T + 9))
        e('v_mul_u32_u24 v%d, 205, v%d' % (T + 1, T))
        e('v_lshrrev_b32 v%d, 10, v%d' % (T + 1, T + 1))
        e('v_mul_u32_u24 v%d, 5, v%d' % (T + 1, T + 1))
        e('v_sub_u32 v%d, v%d, v%d' % (T + 1, T, T + 1))
        e('v_mul_u32_u24 v%d, s%d, v%d' % (T + 1, t2, T + 1))
        e('v_cmp_le_u32 vcc, 2, v%d' % (T + 1))
        e('v_mul_u32_u24 v%d, 6554, v%d' % (T + 5, L))
        e('v_lshrrev_b32 v%d, 16, v%d' % (T + 5, T + 5))
        e('v_cndmask_b32_e64 v%d, 0, 4, vcc' % (T + 2))
        e('v_cmp_eq_u32 vcc, 4, v%d' % (T + 1))
        e('v_mul_u32_u24 v%d, 1120, v%d' % (T + 5, T + 5))
        e('v_add_u32 v%d, v%d, v%d' % (T + 5, T + 5, V.L16))
        e('v_cndmask_b32_e64 v%d, v%d, -16, vcc' % (T + 2, T + 2))
        e('v_cndmask_b32_e64 v%d, 4, 20, vcc' % (T + 3))
        e('v_lshl_add_u32 v%d, v%d, 3, v%d' % (T + 2, T, T + 2))
        e('v_add_u32 v%d, v%d, v%d' % (T + 3, T + 3, T + 2))
        e('s_mul_i32 s%d, s%d, 160' % (t3, S.CB))
        e('v_mov_b32 v%d, 1280' % (T + 4))
        e('v_mad_u32_u24 v%d, v%d, v%d, s%d' % (T + 2, T + 2, T + 4, t3))
        e('v_mad_u32_u24 v%d, v%d, v%d, s%d' % (T + 3, T + 3, T + 4, t3))
        RBS = 84
        RBS = SRD_WQKV
        rb = [16, 17, 18, 19, 24, 25, 26, 27]
        for i in range(8):
            e('v_readlane_b32 s%d, v%d, %d' % (rb[i], T + 2 + (i & 1), i >> 1))
        BSC = self.BSC = 28
        e('s_mul_i32 s%d, s%d, 5120' % (BSC, S.W))
        e('s_add_u32 s%d, s%d, %d' % (BSC, BSC, SCR + 16384))
        e('s_cmp_ge_u32 s%d, 54' % KS)
        self.csel(SRD_W2O + 2, 819200, 2211840)
        e('s_mov_b32 s%d, 0x00020000' % (SRD_W2O + 3))
        e('s_cselect_b32 s%d, s46, s52' % SRD_W2O)
        e('s_cselect_b32 s%d, s47, s53' % (SRD_W2O + 1))
        self.rb = rb
        self.stamp('ka')
        if o.bearly:
            self.b_dma()
        e('s_branch L_JOINA')
        endB = a.snapshot()
        a.restore(snap)
        self.nstamp -= 1 if (o.stamps and 'ka' in o.st) else 0
        a.label('L_ROLEA')
        O = self.O = 79
        e('s_mul_i32 s%d, s%d, 5' % (O, S.R))
        e('s_add_u32 s%d, s%d, s%d' % (O, O, S.W))
        e('s_sub_u32 s%d, s%d, 3' % (O, O))
        e('s_mul_i32 s%d, s%d, %d' % (t1, O, 8 * 3840))
        e('s_mul_i32 s%d, s%d, 80' % (t2, S.C))
        e('s_add_u32 s%d, s%d, s%d' % (t1, t1, t2))
        e('s_add_u32 s%d, s%d, %d' % (t2, t1, 4 * 3840 - 960))
        e('v_mul_u32_u24 v%d, 4370, v%d' % (T, L))
        e('v_lshrrev_b32 v%d, 16, v%d' % (T, T))
        e('v_mul_u32_u24 v%d, 15, v%d' % (T + 1, T))
        e('v_sub_u32 v%d, v%d, v%d' % (T + 1, L, T + 1))
        e('v_mul_u32_u24 v%d, 52, v%d' % (T + 2, T + 1))
        e('v_lshrrev_b32 v%d, 8, v%d' % (T + 2, T + 2))
        e('v_mul_u32_u24 v%d, 3840, v%d' % (T, T))
        e('v_lshl_add_u32 v%d, v%d, 4, v%d' % (T, T + 1, T))
        e('v_mul_u32_u24 v%d, 1200, v%d' % (T + 2, T + 2))
        e('v_add_u32 v%d, v%d, v%d' % (T, T, T + 2))
        WPH = SRD_W2O
        e('s_cmp_ge_u32 s%d, 6' % S.R)
        e('s_cselect_b32 s%d, 1, 0' % WPH)
        e('s_lshl_b32 s%d, s%d, 1' % (t3, S.C))
        e('s_add_u32 s%d, s%d, s%d' % (t3, t3, WPH))
        e('s_mul_i32 s%d, s%d, 800' % (t3, t3))
        e('s_cmp_eq_u32 s%d, 3' % S.W)
        e('s_cselect_b32 s%d, s%d, %d' % (t3, t3, BIGV))
        WPS = self.WPS = SCR + 10240
        e('s_cselect_b32 s%d, 0, 0x400' % (WPH + 1))
        e('v_cmp_gt_u32 vcc, 50, v%d' % L)
        e('s_lshl_b32 s%d, s%d, 4' % (WPH + 2, O))
        e('s_add_u32 m0, s%d, %d' % (S.W2K, SCR - 3 * 2048))
        e('v_cndmask_b32_e64 v%d, %s, v%d, vcc' % (T + 1, BIG, V.L16))
        e('s_mov_b32 exec_hi, 0x0fffffff')
        self.mk_srd(SRD_WQKV, 42, 2457600)
        self.stamp('ka')
        e('buffer_load_dwordx4 v%d, %s, s%d offen lds' % (T, srd(SRD_WQKV), BIGS if 'A' in o.dbg else t1), 'g0')
        e('buffer_load_dwordx4 v%d, %s, s%d offen offset:960 lds' % (T, srd(SRD_WQKV), BIGS if 'A' in o.dbg else t2), 'g0')
        e('s_mov_b32 exec_hi, -1')
        self.mk_srd(SRD_WPHI, 44, 25600)
        e('s_add_u32 m0, s%d, %d' % (WPH + 1, WPS))
        self.mk_srd(SRD_GW, 54, 1280)
        e('buffer_load_dwordx4 v%d, %s, s%d offen lds' % (T + 1, srd(SRD_WPHI), t3), 'g0')
        e('buffer_load_dwordx4 %s, off, %s, s%d' % (vr(V.X + 16, 4), srd(SRD_GW), WPH + 2), 'g0')
        endA = a.snapshot()
        a.label('L_JOINA')
        a.merge(endA, endB)
        self.mk_srd(SRD_WS, 60, 268435456)
        e('buffer_load_dword v%d, off, %s, 0 offset:%d sc1' % (V.M6, srd(SRD_WS), EPOCH_OFF), 'g0')
        self.mk_srd(SRD_X, 40, 2621440)
        self.mk_srd(SRD_W1, 50, 2211840)
        self.mk_srd(SRD_OUT, 56, 2621440)
        t0 = S.T0
        e('s_and_b32 s%d, s%d, 3' % (S.PT, S.W))
        e('s_lshr_b32 s%d, s%d, 2' % (S.FH, S.W))
        e('s_add_u32 s%d, s%d, s%d' % (t0, S.R, S.C))
        if o.rot:
            e('s_mul_i32 s%d, s%d, 26' % (t1, t0))
            e('s_lshr_b32 s%d, s%d, 8' % (t1, t1))
            e('s_mul_i32 s%d, s%d, 10' % (t1, t1))
            e('s_sub_u32 s%d, s%d, s%d' % (S.ST, t0, t1))
        else:
            e('s_mov_b32 s%d, 0' % S.ST)
        e('s_mov_b32 s%d, s%d' % (S.QST, S.ST))
        e('s_lshl_b32 s%d, s%d, 3' % (t0, S.R))
        e('s_add_u32 s%d, s%d, s%d' % (t0, t0, S.W))
        e('s_mul_i32 s%d, s%d, 20480' % (t0, t0))
        e('s_lshl_b32 s%d, s%d, 7' % (t1, S.ST))
        e('s_add_u32 s%d, s%d, s%d' % (S.XS, t0, t1))
        e('v_lshrrev_b32 v3, 3, v%d' % L)
        e('v_mul_u32_u24 v3, 1280, v3')
        e('v_and_b32 v4, 7, v%d' % L)
        e('v_lshrrev_b32 v%d, 4, v%d' % (T + 10, L))
        e('v_xor_b32 v4, v4, v%d' % (T + 10))
        e('v_lshl_add_u32 v%d, v4, 4, v3' % V.XO0)
        e('v_xor_b32 v%d, 64, v%d' % (V.XO1, V.XO0))
        e('v_add_u32 v%d, %d, v%d' % (V.XO1, 8 * 1280 - 1024, V.XO1))
        e('s_lshl_b32 s%d, s%d, 8' % (t0, S.C))
        e('s_lshl_b32 s%d, s%d, 7' % (t1, S.C))
        e('s_add_u32 s%d, s%d, 1408' % (t1, t1))
        e('s_min_u32 s%d, s%d, s%d' % (t0, t0, t1))
        e('s_lshr_b32 s%d, s%d, 6' % (S.HK0, t0))
        e('s_lshl_b32 s%d, s%d, 3' % (t1, S.ST))
        e('s_add_u32 s%d, s%d, s%d' % (t1, t1, S.W))
        e('s_mul_i32 s%d, s%d, %d' % (t1, t1, 8 * 3456))
        e('s_add_u32 s%d, s%d, s%d' % (S.WS, t0, t1))
        e('v_bfe_u32 v%d, v%d, 2, 2' % (T + 8, L))
        e('v_mul_u32_u24 v3, 3456, v%d' % (T + 8))
        e('v_lshl_add_u32 v3, v%d, 6, v3' % (T + 10))
        e('v_lshl_add_u32 v3, v%d, 4, v3' % (T + 9))
        e('s_cmp_ge_u32 s%d, 11' % S.C)
        e('s_cselect_b32 vcc_hi, 0, -1')
        e('s_mov_b32 vcc_lo, -1')
        e('v_cndmask_b32_e64 v%d, %s, v3, vcc' % (V.WO0, BIG))
        e('v_add_u32 v%d, %d, v%d' % (V.WO1, 4 * 3456 - 1024, V.WO0))
        if o.p0bar:
            a.barrier()
        self.stamp('bar0')
        for u in range(0, o.nfirst):
            self.run(self.load_xw(u))
        self.stamp('ri')

    def b_dma(self):
        e = self.e
        e('s_mov_b32 exec_hi, 0xff')
        for i in range(8):
            e('s_add_u32 m0, s%d, %d' % (self.BSC, 640 * i))
            e('buffer_load_dwordx4 v%d, %s, s%d offen lds' % (self.T + 5, srd(SRD_W2O), BIGS if 'B' in self.o.dbg else self.rb[i]), 'gb')
        e('s_mov_b32 exec_hi, -1')

    def b_process(self):
        a, e = self.a, self.e
        L = V.LANE
        T = V.X + 110
        G = V.X + 120
        KS, BSC = self.KS, self.BSC
        lj = a.newlabel('L_BJ')
        e('s_cmp_ge_u32 s%d, 3' % S.W)
        e('s_cbranch_scc1 %s' % lj)
        snap = a.snapshot()
        e('v_lshrrev_b32 v%d, 4, v%d' % (T, L))
        e('v_mul_u32_u24 v%d, 1280, v%d' % (T, T))
        e('v_bfe_u32 v%d, v%d, 2, 2' % (T + 1, L))
        e('v_mul_u32_u24 v%d, 160, v%d' % (T + 1, T + 1))
        e('v_and_b32 v%d, 3, v%d' % (T + 2, L))
        e('v_lshl_add_u32 v%d, v%d, 3, v%d' % (T, T + 2, T))
        e('v_add3_u32 v%d, v%d, v%d, s%d' % (T, T, T + 1, BSC))
        e('s_mul_i32 s%d, s%d, 74' % (S.T4, S.CB))
        e('s_add_u32 s%d, s%d, s%d' % (S.T4, S.T4, KS))
        e('s_mul_i32 s%d, s%d, 5120' % (S.T4, S.T4))
        e('s_add_u32 s%d, s%d, %d' % (S.T4, S.T4, W2P_OFF))
        e('s_cmp_lt_u32 s%d, 74' % KS)
        e('s_cselect_b32 s%d, s%d, %d' % (S.T4, S.T4, BIGV))
        e('s_add_u32 s%d, s%d, 4096' % (S.T5, S.T4))
        a.wait_vm_tag('gb')
        for tt in range(5):
            for i in range(2):
                e('ds_read_b64_tr_b16 %s, v%d offset:%d' % (vr(G + 4 * tt + 2 * i, 2), T, i * 640 + tt * 32))
        for tt in range(5):
            e('buffer_store_dwordx4 %s, v%d, %s, s%d offen offset:%d sc1' % (vr(G + 4 * tt, 4), V.L16, srd(SRD_WS), S.T4 if tt < 4 else S.T5, (tt & 3) * 1024), 'pbst')
        end = a.snapshot()
        a.label(lj)
        a.merge(snap, end)

    def phase0(self):
        a, e, o = self.a, self.e, self.o
        L = V.LANE
        SCR, T, WPS, KS, O, BSC = self.SCR, self.T, self.WPS, self.KS, self.O, self.BSC
        G = V.X
        ONES = V.X + 60
        e('s_cmp_ge_u32 s%d, 3' % S.W)
        e('s_cbranch_scc1 L_ROLEA2')
        snap = a.snapshot()
        if not o.bearly:
            self.b_dma()
        e('s_branch L_JOIN0')
        endB = a.snapshot()
        a.restore(snap)
        a.label('L_ROLEA2')
        HH, IDX, TILE, BLK = SRD_W2O, S.T5, S.T6, S.T7
        m0, m1, m2 = S.M0, S.M1, S.M2
        for i in range(4):
            e('v_mov_b32 v%d, -1' % (ONES + i))
        e('v_lshl_add_u32 v%d, v%d, 2, v%d' % (T + 2, T + 10, T + 9))
        e('v_and_b32 v%d, 7, v%d' % (T + 3, T + 2))
        e('v_lshrrev_b32 v%d, 3, v%d' % (T + 4, T + 2))
        e('v_lshlrev_b32 v%d, 4, v%d' % (T + 5, T + 3))
        e('v_lshl_add_u32 v%d, v%d, 3, v%d' % (T + 5, T + 4, T + 5))
        e('v_add_u32 v%d, 80, v%d' % (T + 5, T + 5))
        e('v_mul_u32_u24 v%d, 80, v%d' % (T + 6, T + 4))
        e('v_lshlrev_b32 v%d, 3, v%d' % (T + 7, T + 3))
        e('v_sub_u32 v%d, v%d, v%d' % (T + 7, T + 7, T + 6))
        e('v_add_u32 v%d, 80, v%d' % (T + 7, T + 7))
        e('v_cmp_le_u32 vcc, 5, v%d' % (T + 3))
        e('v_cndmask_b32_e32 v%d, v%d, v%d, vcc' % (T + 7, T + 7, T + 5))
        e('v_mul_u32_u24 v%d, 240, v%d' % (T + 5, T + 8))
        e('v_add_u32 v%d, v%d, v%d' % (T + 7, T + 7, T + 5))
        e('v_add_u32 v%d, s%d, v%d' % (T + 7, S.W2K, T + 7))
        e('v_add_u32 v%d, %d, v%d' % (T + 7, SCR - 3 * 2048, T + 7))
        e('s_mul_i32 s%d, s%d, 6' % (IDX, HH))
        e('s_sub_u32 s%d, s%d, s%d' % (IDX, S.R, IDX))
        e('s_cmp_ge_u32 s%d, 3' % IDX)
        e('s_cselect_b32 s%d, 1, 0' % TILE)
        e('s_mul_i32 s%d, s%d, 3' % (BLK, TILE))
        e('s_sub_u32 s%d, s%d, s%d' % (BLK, IDX, BLK))
        e('s_cmp_eq_u32 s%d, 1' % BLK)
        self.csel(m0, '0xaaaaaaaa', '0x55555555')
        e('s_cmp_eq_u32 s%d, 0' % BLK)
        self.csel(m1, '0x55555555', '0xaaaaaaaa')
        e('s_cmp_eq_u32 s%d, 1' % TILE)
        e('s_cselect_b32 s%d, 0x3333, -1' % m2)
        e('s_cselect_b32 s%d, 0, 8' % (m2 + 1))
        e('s_cselect_b32 s%d, 32, 0' % TILE)
        e('s_and_b32 s%d, s%d, s%d' % (m0, m0, m2))
        e('s_and_b32 s%d, s%d, s%d' % (m1, m1, m2))
        e('s_cmp_ge_u32 s%d, 2' % BLK)
        e('s_cselect_b32 s%d, 0, s%d' % (m0 + 1, m0))
        e('s_cselect_b32 s%d, 0, s%d' % (m1 + 1, m1))
        e('s_cselect_b32 s%d, 640, 0' % IDX)
        self.csel(BLK, 640, 320)
        e('s_add_u32 s%d, s%d, s%d' % (IDX, IDX, TILE))
        e('s_add_u32 s%d, s%d, s%d' % (BLK, BLK, TILE))
        e('v_bfe_u32 v%d, v%d, 4, 1' % (T + 2, L))
        e('v_bfe_u32 v%d, v%d, 1, 1' % (T + 3, L))
        e('v_lshl_add_u32 v%d, v%d, 1, v%d' % (T + 2, T + 2, T + 3))
        e('v_mul_u32_u24 v%d, s%d, v%d' % (T + 2, m2 + 1, T + 2))
        e('v_lshrrev_b32 v%d, 5, v%d' % (T + 3, L))
        e('v_lshl_add_u32 v%d, v%d, 2, v%d' % (T + 3, T + 3, T + 8))
        e('v_mul_u32_u24 v%d, 40, v%d' % (T + 3, T + 3))
        e('v_add_u32 v%d, v%d, v%d' % (T + 2, T + 2, T + 3))
        e('v_add_u32 v%d, s%d, v%d' % (T + 3, IDX, T + 2))
        e('v_add_u32 v%d, s%d, v%d' % (T + 4, BLK, T + 2))
        e('v_mov_b32 v%d, 800' % (T + 2))
        e('v_cndmask_b32_e64 v%d, v%d, v%d, %s' % (T + 3, T + 2, T + 3, sr(m0, 2)))
        e('v_cndmask_b32_e64 v%d, v%d, v%d, %s' % (T + 4, T + 2, T + 4, sr(m1, 2)))
        e('v_add_u32 v%d, %d, v%d' % (T + 3, WPS, T + 3))
        e('v_add_u32 v%d, %d, v%d' % (T + 4, WPS, T + 4))
        e('v_and_b32 v%d, 31, v%d' % (T, L))
        e('v_lshlrev_b32 v%d, 4, v%d' % (T, T))
        e('v_lshrrev_b32 v%d, 5, v%d' % (T + 1, L))
        e('v_lshl_add_u32 v%d, v%d, 10, v%d' % (T, T + 1, T))
        e('s_mul_i32 s%d, s%d, 163840' % (m2, S.C))
        e('s_lshr_b32 s%d, s%d, 1' % (m2 + 1, O))
        e('s_lshl_b32 s%d, s%d, 12' % (m2 + 1, m2 + 1))
        e('s_add_u32 s%d, s%d, s%d' % (m2, m2, m2 + 1))
        e('s_and_b32 s%d, s%d, 1' % (m2 + 1, O))
        e('s_lshl_b32 s%d, s%d, 9' % (m2 + 1, m2 + 1))
        e('s_add_u32 s%d, s%d, s%d' % (m2, m2, m2 + 1))
        e('s_add_u32 s%d, s%d, %d' % (m2, m2, WQ_OFF))
        e('s_mul_i32 s%d, s%d, 12' % (m2 + 1, S.C))
        e('s_add_u32 s%d, s%d, s%d' % (m2 + 1, m2 + 1, S.R))
        e('s_lshl_b32 s%d, s%d, 10' % (m2 + 1, m2 + 1))
        e('s_add_u32 s%d, s%d, %d' % (m2 + 1, m2 + 1, WPHI_OFF))
        e('s_cmp_eq_u32 s%d, 3' % S.W)
        e('s_cselect_b32 s%d, s%d, %d' % (m2 + 1, m2 + 1, BIGV))
        e('s_cmp_lt_u32 s%d, 12' % S.R)
        e('s_cselect_b32 s%d, s%d, %d' % (m2 + 1, m2 + 1, BIGV))
        e('s_lshl_b32 s%d, s%d, 4' % (O, S.C))
        e('s_add_u32 s%d, s%d, s%d' % (O, O, S.R))
        e('s_mul_i32 s%d, s%d, %d' % (O, O, KVP_STRIDE))
        e('s_add_u32 s%d, s%d, %d' % (O, O, KVP_OFF - 192 * 16))
        e('v_lshlrev_b32 v%d, 4, v0' % (T + 1))
        e('v_cmp_gt_u32 vcc, %d, v0' % (192 + 224))
        e('v_cndmask_b32_e64 v%d, %s, v%d, vcc' % (T + 1, BIG, T + 1))
        a.wait_vm_tag('g0')
        for hh in range(2):
            for i in range(2):
                e('ds_read_b64_tr_b16 %s, v%d offset:%d' % (vr(G + 4 * hh + 2 * i, 2), T + 7, i * 960 + hh * 40))
        e('ds_read_b64_tr_b16 %s, v%d' % (vr(G + 8, 2), T + 3))
        e('ds_read_b64_tr_b16 %s, v%d' % (vr(G + 10, 2), T + 4))
        e('v_cmp_eq_u32 vcc, 60, v%d' % L)
        e('v_cmp_lt_u32 %s, 60, v%d' % (sr(m0, 2), L))
        for i in range(4):
            e('v_cndmask_b32_e64 v%d, 0, v%d, vcc' % (G + 16 + i, G + 16 + i))
        e('s_or_b64 vcc, vcc, %s' % sr(m0, 2))
        for hh in range(2):
            for i in range(4):
                e('v_cndmask_b32_e32 v%d, v%d, v%d, vcc' % (G + 4 * hh + i, G + 4 * hh + i, G + 16 + i))
            e('buffer_store_dwordx4 %s, v%d, %s, s%d offen offset:%d sc1' % (vr(G + 4 * hh, 4), T, srd(SRD_WS), m2, hh * 2048), 'p0st')
        e('buffer_store_dwordx4 %s, v%d, %s, s%d offen sc1' % (vr(G + 8, 4), V.L16, srd(SRD_WS), m2 + 1), 'p0st')
        e('buffer_store_dwordx4 %s, v%d, %s, s%d offen sc1' % (vr(ONES, 4), T + 1, srd(SRD_WS), O), 'p0st')
        endA = a.snapshot()
        a.label('L_JOIN0')
        a.merge(endA, endB)
        self.stamp('p0')
        for u in range(o.nfirst, o.npre):
            self.run(self.load_xw(u))
        t0, t1 = S.T0, S.T1
        if o.codepf:
            e('s_getpc_b64 %s' % sr(SRD_CODE, 2))
            a.label('L_PC')
            e('s_mov_b32 s%d, L_CODE_END-L_PC' % (SRD_CODE + 2))
            e('s_mov_b32 s%d, 0x00020000' % (SRD_CODE + 3))
            e('s_lshr_b32 s%d, s2, 3' % t0)
            e('s_lshl_b32 s%d, s%d, 11' % (t0, t0))
            e('s_cmp_eq_u32 s%d, 7' % S.W)
            e('s_cselect_b32 s%d, s%d, s%d' % (t0, t0, BIGS))
            e('v_and_b32 v4, 15, v%d' % L)
            e('v_lshlrev_b32 v4, 7, v4')
            e('v_lshrrev_b32 v5, 4, v%d' % L)
            e('v_lshl_add_u32 v4, v5, 16, v4')
            e('buffer_load_dword v%d, v4, %s, s%d offen' % (V.HT + 11, srd(SRD_CODE), t0), 'pf')
        e('s_mul_i32 s%d, s%d, 163840' % (t0, S.C))
        e('s_lshl_b32 s%d, s%d, 14' % (t1, S.QST))
        e('s_add_u32 s%d, s%d, s%d' % (t0, t0, t1))
        e('s_add_u32 s%d, s%d, s%d' % (S.QS, t0, S.W2K))
        e('s_add_u32 s%d, s%d, %d' % (S.QS, S.QS, WQ_OFF))
        e('v_readfirstlane_b32 s%d, v%d' % (S.TAG, V.M6))
        e('s_add_u32 s%d, s%d, 1' % (S.TAG, S.TAG))

    def flag_store(self, soff, tag, vt, wave0=False):
        e = self.e
        for i in range(4):
            e('v_mov_b32 v%d, s%d' % (vt + i, S.TAG))
        e('v_cmp_gt_u32 vcc, 8, v%d' % (0 if wave0 else V.LANE))
        e('v_cndmask_b32_e64 v%d, %s, v%d, vcc' % (vt + 4, BIG, V.L16))
        e('buffer_store_dwordx4 %s, v%d, %s, s%d offen sc1' % (vr(vt, 4), vt + 4, srd(SRD_WS), soff), tag)

    def wg_flag_store(self, off, hi, lo, sh, vt, tag):
        e = self.e
        e('s_lshl_b32 s%d, s%d, %d' % (S.T0, hi, sh))
        e('s_add_u32 s%d, s%d, s%d' % (S.T0, S.T0, lo))
        e('s_lshl_b32 s%d, s%d, 7' % (S.T0, S.T0))
        e('s_add_u32 s%d, s%d, %d' % (S.T0, S.T0, off))
        self.flag_store(S.T0, tag, vt, wave0=True)

    def poll_issue(self, vd, va, sp, off, hi, nl, wave, tag):
        a, e = self.a, self.e
        ld = a.newlabel('L_PI')
        e('s_mul_i32 s%d, s%d, %d' % (sp, hi, nl * 128))
        e('s_add_u32 s%d, s%d, %d' % (sp, sp, off))
        e('v_and_b32 v%d, %d, v%d' % (va, nl - 1, V.LANE))
        e('v_lshlrev_b32 v%d, 7, v%d' % (va, va))
        e('s_cmp_lg_u32 s%d, %d' % (S.W, wave))
        e('s_cbranch_scc1 %s' % ld)
        snap = a.snapshot()
        e('buffer_load_dword v%d, v%d, %s, s%d offen sc1' % (vd, va, srd(SRD_WS), sp), tag)
        end = a.snapshot()
        a.label(ld)
        a.merge(snap, end)

    def poll_check(self, vd, va, sp, wave, maxit=4000):
        a, e = self.a, self.e
        lo, ld = a.newlabel('L_PL'), a.newlabel('L_PD')
        e('s_cmp_lg_u32 s%d, %d' % (S.W, wave))
        e('s_cbranch_scc1 %s' % ld)
        snap = a.snapshot()
        e('v_cmp_ne_u32 vcc, s%d, v%d' % (S.TAG, vd))
        e('s_mov_b32 s%d, %d' % (S.CNT, maxit))
        e('s_cbranch_vccz %s' % ld)
        snap2 = a.snapshot()
        a.label(lo)
        e('s_sleep %d' % self.o.psleep)
        e('buffer_load_dword v%d, v%d, %s, s%d offen sc1' % (vd, va, srd(SRD_WS), sp), 'pl')
        a.wait_vm(0)
        e('s_sub_u32 s%d, s%d, 1' % (S.CNT, S.CNT))
        e('s_cmp_eq_u32 s%d, 0' % S.CNT)
        e('s_cbranch_scc1 %s' % ld)
        e('v_cmp_ne_u32 vcc, s%d, v%d' % (S.TAG, vd))
        e('s_cbranch_vccnz %s' % lo)
        end = a.snapshot()
        a.label(ld)
        a.merge(snap, snap2)
        a.merge(a.snapshot(), end)

    def hq_setup(self):
        e = self.e
        L = V.LANE
        T = V.HT
        e('v_and_b32 v%d, 31, v%d' % (T, L))
        e('s_lshl_b32 s%d, s%d, 12' % (S.T0, S.PT))
        e('v_lshlrev_b32 v%d, 7, v%d' % (T + 1, T))
        e('v_add_u32 v%d, s%d, v%d' % (T + 1, S.T0, T + 1))
        e('v_bfe_u32 v%d, v%d, 1, 3' % (T + 2, L))
        e('v_lshrrev_b32 v%d, 5, v%d' % (T + 3, L))
        e('v_xor_b32 v%d, v%d, v%d' % (T + 2, T + 2, T + 3))
        e('v_lshl_add_u32 v%d, v%d, 4, v%d' % (V.XR, T + 2, T + 1))
        for kk in range(1, 4):
            e('v_xor_b32 v%d, %d, v%d' % (V.XR + kk, kk * 32, V.XR))
        for win in (1, 2):
            for kk in range(4):
                e('v_add_u32 v%d, %d, v%d' % (V.XR + 4 * win + kk, win * 65536, V.XR + kk))
        e('v_lshlrev_b32 v%d, 11, v%d' % (T, T + 3))
        e('v_bfe_u32 v%d, v%d, 2, 2' % (T + 1, L))
        e('v_lshl_add_u32 v%d, v%d, 6, v%d' % (T, T + 1, T))
        e('v_bfe_u32 v%d, v%d, 4, 1' % (T + 1, L))
        e('v_lshl_add_u32 v%d, v%d, 5, v%d' % (T, T + 1, T))
        e('v_and_b32 v%d, 1, v%d' % (T + 1, L))
        e('v_lshl_add_u32 v%d, v%d, 4, v%d' % (T, T + 1, T))
        e('v_bfe_u32 v%d, v%d, 1, 1' % (T + 1, L))
        e('v_lshl_add_u32 v%d, v%d, 3, v%d' % (T, T + 1, T))
        e('s_lshl_b32 s%d, s%d, 9' % (S.T0, S.FH))
        e('v_add_u32 v%d, s%d, v%d' % (V.TR, S.T0, T))
        e('v_add_u32 v%d, %d, v%d' % (V.TR + 1, 65536, V.TR))
        e('v_add_u32 v%d, %d, v%d' % (V.TR + 2, 131072, V.TR))
        e('s_lshl_b32 s%d, s%d, 11' % (S.T0, S.FH))
        e('v_add_u32 v%d, s%d, v%d' % (V.QR, S.T0, V.L16))
        e('v_add_u32 v%d, %d, v%d' % (V.QR + 1, 65536, V.QR))
        e('v_add_u32 v%d, %d, v%d' % (V.QR + 2, 131072, V.QR))
        e('s_mov_b32 s%d, 0x%08x' % (S.NL2E, f2u(-LOG2E)))
        e('s_mov_b32 s%d, 0x%08x' % (S.NL2E + 1, f2u(-LOG2E)))
        e('s_mov_b32 s%d, 1.0' % S.ONE2)
        e('s_mov_b32 s%d, 1.0' % (S.ONE2 + 1))

    def act_base(self, sd, vd, vt):
        e = self.e
        L = V.LANE
        e('s_lshl_b32 s%d, s%d, 2' % (sd, S.R))
        e('s_add_u32 s%d, s%d, s%d' % (sd, sd, S.PT))
        e('s_mul_i32 s%d, s%d, %d' % (sd, sd, 2 * ACT_PT))
        e('s_add_u32 s%d, s%d, %d' % (sd, sd, ACT_OFF))
        e('v_bfe_u32 v%d, v%d, 4, 1' % (vd, L))
        e('v_mul_u32_u24 v%d, %d, v%d' % (vd, ACT_PT, vd))
        e('v_lshrrev_b32 v%d, 5, v%d' % (vt, L))
        e('v_lshl_add_u32 v%d, v%d, 8, v%d' % (vd, vt, vd))
        e('v_and_b32 v%d, 15, v%d' % (vt, L))
        e('v_lshl_add_u32 v%d, v%d, 4, v%d' % (vd, vt, vd))

    def resets(self):
        e = self.e
        T = V.HT
        self.act_base(S.T0, T, T + 1)
        for i in range(4):
            e('v_mov_b32 v%d, -1' % (T + 4 + i))
        e('s_mul_i32 s%d, s%d, 1280' % (S.T1, S.C))
        e('s_add_u32 s%d, s%d, s%d' % (S.T0, S.T0, S.T1))
        e('s_add_u32 s%d, s%d, %d' % (S.T0, S.T0, 54 * 1024))
        e('s_lshl_b32 s%d, s%d, 9' % (S.T1, S.FH))
        e('s_add_u32 s%d, s%d, s%d' % (S.T1, S.T1, S.T0))
        e('buffer_store_dwordx4 %s, v%d, %s, s%d offen sc1' % (vr(T + 4, 4), T, srd(SRD_WS), S.T1), 'rst')
        e('v_cmp_gt_u32 vcc, 32, v%d' % V.LANE)
        e('v_cndmask_b32_e64 v%d, %s, v%d, vcc' % (T + 1, BIG, T))
        e('s_cmp_eq_u32 s%d, 0' % S.FH)
        e('s_cselect_b32 s%d, s%d, s%d' % (S.T0, S.T0, BIGS))
        e('buffer_store_dwordx4 %s, v%d, %s, s%d offen offset:1024 sc1' % (vr(T + 4, 4), T + 1, srd(SRD_WS), S.T0), 'rst')
        self.g_addr(S.T0, T + 2)
        e('buffer_store_dwordx4 %s, v%d, %s, s%d offen sc1' % (vr(T + 4, 4), T + 2, srd(SRD_WS), S.T0), 'rst')

    def g_addr(self, sd, vd):
        e = self.e
        e('s_lshl_b32 s%d, s%d, 2' % (sd, S.R))
        e('s_add_u32 s%d, s%d, s%d' % (sd, sd, S.PT))
        e('s_lshl_b32 s%d, s%d, 7' % (sd, sd))
        e('s_add_u32 s%d, s%d, %d' % (sd, sd, G_OFF))
        e('s_or_b32 s%d, s%d, s%d' % (S.T7, S.C, S.FH))
        e('s_cmp_eq_u32 s%d, 0' % S.T7)
        e('s_cselect_b32 s%d, s%d, s%d' % (sd, sd, BIGS))
        if vd is not None:
            e('v_cmp_gt_u32 vcc, 8, v%d' % V.LANE)
            e('v_cndmask_b32_e64 v%d, %s, v%d, vcc' % (vd, BIG, V.L16))

    def h_epilogue(self):
        F = []
        T = V.X
        AV, AT = V.M6, V.M7
        HS = S.T6
        F.append(lambda: self.act_base(HS, AV, AT))

        def soff():
            e = self.e
            e('s_lshl_b32 s%d, s%d, 1' % (S.T7, S.FH))
            e('s_add_u32 s%d, s%d, s%d' % (S.T7, S.T7, S.HK0))
            e('s_lshl_b32 s%d, s%d, 10' % (S.T7, S.T7))
            e('s_add_u32 s%d, s%d, s%d' % (HS, HS, S.T7))
            e('s_cmp_ge_u32 s%d, 11' % S.C)
            e('s_cselect_b32 s%d, s%d, 0' % (S.T7, S.FH))
            e('s_cmp_eq_u32 s%d, 0' % S.T7)
            e('s_cselect_b32 s%d, s%d, s%d' % (HS, HS, BIGS))
        F.append(soff)
        for gq in range(4):
            A = V.ACCH + 8 * gq
            tp = T + 8 * (gq & 1)
            for j in range(8):
                F.append('v_mul_f32 v%d, s%d, v%d' % (tp + j, S.NL2E, A + j))
            for j in range(8):
                F.append('v_exp_f32 v%d, v%d' % (tp + j, tp + j))
                if j >= 2:
                    F.append('v_add_f32 v%d, 1.0, v%d' % (tp + j - 2, tp + j - 2))
            for j in range(8):
                if j < 2:
                    F.append('v_add_f32 v%d, 1.0, v%d' % (tp + 6 + j, tp + 6 + j))
                F.append('v_rcp_f32 v%d, v%d' % (tp + j, tp + j))
                if j >= 2:
                    F.append('v_mul_f32 v%d, v%d, v%d' % (tp + j - 2, tp + j - 2, A + j - 2))
            for j in range(6, 8):
                F.append('v_mul_f32 v%d, v%d, v%d' % (tp + j, tp + j, A + j))
            for j in range(4):
                F.append('v_cvt_pk_bf16_f32 v%d, v%d, v%d' % (A + j, tp + 2 * j, tp + 2 * j + 1))
            F.append(('buffer_store_dwordx4 %s, v%d, %s, s%d offen offset:%d sc1' % (vr(A, 4), AV, srd(SRD_WS), HS, (gq >> 1) * 1024 + (gq & 1) * 512), 'hst'))
        return F

    def h_flag(self, vt):
        a, e = self.a, self.e
        e('s_lshl_b32 s%d, s%d, 2' % (S.T0, S.R))
        e('s_add_u32 s%d, s%d, s%d' % (S.T0, S.T0, S.PT))
        e('s_lshl_b32 s%d, s%d, 4' % (S.T0, S.T0))
        e('s_add_u32 s%d, s%d, s%d' % (S.T0, S.T0, S.C))
        e('s_lshl_b32 s%d, s%d, 1' % (S.T0, S.T0))
        e('s_add_u32 s%d, s%d, s%d' % (S.T0, S.T0, S.FH))
        e('s_lshl_b32 s%d, s%d, 7' % (S.T0, S.T0))
        e('s_add_u32 s%d, s%d, %d' % (S.T0, S.T0, HF_OFF))
        a.wait_vm_tag('hst', 'rst')
        self.flag_store(S.T0, 'hf', vt)

    def emit_fill(self, F, n):
        for _ in range(n):
            if not F:
                return
            x = F.pop(0)
            if callable(x):
                x()
            elif isinstance(x, tuple):
                self.e(x[0], x[1])
            else:
                self.e(x)

    def rd(self, i):
        e = self.e
        if 'r' in self.o.dbg:
            return
        U, kk = i >> 2, i & 3
        A = V.AS + 8 * (i % 3)
        if U < 10:
            sl = (2 * U) % 10
            e('ds_read_b128 %s, v%d offset:%d' % (vr(V.X + 16 * U + 4 * kk, 4), V.XR + 4 * (sl >> 2) + kk, (sl & 3) * 16384))
            sl += 1
            for t in range(2):
                for ii in range(2):
                    e('ds_read_b64_tr_b16 %s, v%d offset:%d' % (vr(A + 4 * t + 2 * ii, 2), V.TR + (sl >> 2), (sl & 3) * 16384 + kk * 4096 + ii * 1024 + t * 256))
        else:
            sl = U - 10
            for t in range(2):
                e('ds_read_b128 %s, v%d offset:%d' % (vr(A + 4 * t, 4), V.QR + (sl >> 2), (sl & 3) * 16384 + kk * 4096 + t * 1024))

    def gap(self, F, D, nd):
        for _ in range(nd):
            if D:
                D.pop(0)()
        budget = self.o.vbud
        while F and budget > 0:
            x = F[0]
            if callable(x):
                cost = 8
            else:
                t = x[0] if isinstance(x, tuple) else x
                cost = 8 if t.startswith(('v_exp', 'v_rcp', 'buffer', 'ds_')) else 4
            if cost > budget:
                break
            budget -= cost
            self.emit_fill(F, 1)

    def mm(self, i, F=None, D=None, nd=(0, 0)):
        U, kk = i >> 2, i & 3
        A = V.AS + 8 * (i % 3)
        acc = V.ACCH if U < 10 else V.ACCQ
        xb = V.X + 16 * (U % 10) + 4 * kk
        for t in range(2):
            c = '0' if i in (0, 40) else vr(acc + 16 * t, 16)
            if 'm' not in self.o.dbg:
                self.e('v_mfma_f32_32x32x16_bf16 %s, %s, %s, %s' % (vr(acc + 16 * t, 16), vr(A + 4 * t, 4), vr(xb, 4), c))
            if F is not None:
                self.gap(F, D, nd[t])

    def hq_pass(self):
        a, e, o = self.a, self.e, self.o
        pre = {u: [] for u in range(21)}
        post = {u: [] for u in range(21)}
        dm = {u: [] for u in range(21)}
        waits = {u: (['x%d' % u, 'w%d' % u] if u < 10 else ['q%d' % (u - 10)]) for u in range(20)}
        waits[20] = []
        pre[o.bu + 1].append(self.b_process)
        waits[o.afu].append('p0st')
        post[o.afu].append(lambda: self.wg_flag_store(AF_OFF, S.C, S.R, 4, V.HT, 'af'))
        waits[o.bfu].append('pbst')
        post[o.bfu].append(lambda: self.wg_flag_store(BF_OFF, S.CB, S.RB, 5, V.HT, 'bf'))
        post[o.apu].insert(0, lambda: self.poll_issue(V.M7, V.M6, S.PS, AF_OFF, S.C, 16, 0, 'pa'))
        pre[6].append(lambda: self.poll_check(V.M7, V.M6, S.PS, 0))
        for u in range(o.npre, 5):
            dm[0] += self.load_xw(u)
        dm[o.bu + 1] += self.load_w(9, 'w4', S.WS4)
        for u in range(1, 6):
            dm[u] += self.load_xw(u + 4)
        for u in range(6, 11):
            dm[u] += self.load_q(2 * (u - 6)) + self.load_q(2 * (u - 6) + 1)
        post[o.rstu].append(self.resets)
        self.more_events(pre, post, waits, dm)
        F = []
        D = []
        fills = self.fills()
        for U in range(21):
            if U > 0:
                a.wait_lg(0)
                self.mm(4 * U - 2, F, D, (99, 0))
            assert not D
            for x in pre[U]:
                x()
            if waits[U]:
                a.wait_vm_tag(*waits[U])
            self.stamp('w%d' % U)
            if 'b' not in o.dbg:
                a.barrier()
            self.stamp('b%d' % U)
            for x in post[U]:
                x()
            if U == 20:
                self.mm(79)
                break
            D = list(dm[U])
            npos = 7
            per = [len(D) // npos + (1 if k < len(D) % npos else 0) for k in range(npos)] if len(D) > 4 else None
            if per is None:
                per = [0] * npos
                for k in range(len(D)):
                    per[o.dpos[k]] += 1
            for kk in range(4):
                i = 4 * U + kk
                if i in fills:
                    F += fills[i]
                self.rd(i)
                if i in (70, 71):
                    for j in range(3 * (i - 70), 3 * (i - 69)):
                        e('ds_read_b128 %s, v0 offset:%d' % (vr(V.WPH + 4 * j, 4), 1024 * j))
                if kk == 0:
                    for _ in range(per[0]):
                        D.pop(0)()
                    if U > 0:
                        self.mm(i - 1, F, D, per[1:3])
                    else:
                        self.gap([], D, per[1] + per[2])
                elif kk >= 2:
                    self.mm(i - 2, F, D, per[2 * kk - 1:2 * kk + 1])
            if True:
                self.stamp('u%d' % U)
        assert not F, len(F)

    def fills(self):
        o = self.o
        f = {}
        f[46] = self.h_epilogue()
        f[o.hfstep] = [lambda: self.h_flag(V.X + 16)]
        return f

    def p2_setup(self):
        e = self.e
        e('s_mul_i32 s%d, s%d, 74' % (S.WPS, S.CB))
        e('s_add_u32 s%d, s%d, s%d' % (S.WPS, S.WPS, S.W))
        e('s_mul_i32 s%d, s%d, 5120' % (S.WPS, S.WPS))
        e('s_add_u32 s%d, s%d, %d' % (S.WPS, S.WPS, W2P_OFF))
        e('s_mul_i32 s%d, s%d, %d' % (S.APS, S.RB, 4 * ACT_PT))
        e('s_lshl_b32 s%d, s%d, 10' % (S.D0, S.W))
        e('s_add_u32 s%d, s%d, s%d' % (S.APS, S.APS, S.D0))
        e('s_add_u32 s%d, s%d, %d' % (S.APS, S.APS, ACT_OFF))
        e('s_mul_i32 s%d, s%d, 5120' % (S.W5K, S.W))
        e('s_mul_i32 s%d, s%d, 6144' % (S.D0, S.FH))
        e('s_add_u32 s%d, s%d, %d' % (S.D0, S.D0, 5 * 16384))
        e('v_add_u32 v0, s%d, v%d' % (S.D0, V.L16))
        e('s_mul_i32 s%d, s%d, 12288' % (S.WPHS, S.C))
        e('s_add_u32 s%d, s%d, s%d' % (S.WPHS, S.WPHS, S.W2K))
        e('s_add_u32 s%d, s%d, %d' % (S.WPHS, S.WPHS, WPHI_OFF))
        e('s_cmp_lt_u32 s%d, 6' % S.W)
        e('s_cselect_b32 s%d, s%d, s%d' % (S.WPHS, S.WPHS, BIGS))

    def p2_soff(self, i, sd, base, unit):
        e = self.e
        if i < 6:
            e('s_add_u32 s%d, s%d, %d' % (sd, base, 8 * i * unit))
        elif i == 6:
            e('s_add_u32 s%d, s%d, %d' % (sd, base, 48 * unit))
            e('s_cmp_lt_u32 s%d, 6' % S.W)
            e('s_cselect_b32 s%d, s%d, s%d' % (sd, sd, BIGS))
        else:
            e('s_mul_i32 s%d, s%d, %d' % (sd, S.W, -2 * unit))
            e('s_add_u32 s%d, s%d, s%d' % (sd, sd, base))
            e('s_add_u32 s%d, s%d, %d' % (sd, sd, (61 + 8 * (i - 7)) * unit))
            if i == 9:
                e('s_cmp_ge_u32 s%d, 4' % S.W)
                e('s_cselect_b32 s%d, s%d, s%d' % (sd, sd, BIGS))

    def load_wp(self, i):
        so = S.WRS + (i & 1) * 2
        L = []
        for T in range(5):
            pre = None
            if T == 0:
                def pre(i=i, so=so):
                    self.p2_soff(i, so, S.WPS, 5120)
                    self.e('s_add_u32 s%d, s%d, 4096' % (so + 1, so))
            L.append(self.dma(S.W5K, (i % 3) * 40960 + (4096 if T == 4 else 0), V.L16, SRD_WS, so + (1 if T == 4 else 0), (T & 3) * 1024, 'W%d' % i, sc1=True, pre=pre))
        return L

    def load_act(self, i):
        so = S.ARS + (i & 1)
        L = []
        for tt in range(4):
            def f(tt=tt, i=i, so=so):
                if tt == 0:
                    self.p2_soff(i, so, S.APS, 1024)
                self.e('buffer_load_dwordx4 %s, v%d, %s, s%d offen sc1' % (vr(V.ACTB + 16 * (i & 3) + 4 * tt, 4), V.AV[tt], srd(SRD_WS), so), 'A%d' % i)
            L.append(f)
        return L

    def more_events(self, pre, post, waits, dm):
        o = self.o
        post[7].append(self.p2_setup)
        post[8].insert(0, lambda: self.poll_issue(V.HT + 9, V.HT + 8, S.PS, BF_OFF, S.CB, 32, 0, 'pb'))
        pre[10].append(lambda: self.poll_check(V.HT + 9, V.HT + 8, S.PS, 0))
        dm[13] += self.load_wp(0)
        dm[15] += self.load_wp(1)
        dm[16] += [self.dma(S.W2K, 5 * 16384, V.L16, SRD_WS, S.WPHS, 0, 'wph', sc1=True),
                   self.dma(S.W2K, 5 * 16384, V.L16, SRD_WS, S.WPHS, 1024, 'wph', sc1=True)]
        waits[17].append('wph')
        dm[18] += self.load_wp(2)
        post[o.hpu].insert(0, lambda: self.poll_issue(V.M7, V.M6, S.PS, HF_OFF, S.RB, 64, 0, 'ph'))
        pre[20].append(lambda: self.poll_check(V.M7, V.M6, S.PS, 0))

    def q_epilogue(self):
        a, e, o = self.a, self.e, self.o
        L = V.LANE
        AQ = V.ACCQ
        B0, B2, B13, R2 = 8, 12, 16, 20
        D0, D1 = 32, 48
        EP, EM, PH = 64, 200, 44
        SCR2 = 131072
        L2E, NL2E = S.L2E, S.NL2E
        T = 24
        e('s_mov_b32 s%d, 0x%08x' % (L2E, f2u(LOG2E)))
        for tt in range(1, 4):
            e('v_add_u32 v%d, %d, v%d' % (V.AV[tt], tt * ACT_PT, V.L16))
        D = []
        for i in range(o.nact0):
            D += self.load_act(i)
        e('s_lshl_b32 s%d, s%d, 14' % (S.T0, S.FH))
        e('s_lshl_b32 s%d, s%d, 12' % (S.T1, S.PT))
        e('s_add_u32 s%d, s%d, s%d' % (S.T0, S.T0, S.T1))
        e('s_add_u32 s%d, s%d, %d' % (S.T0, S.T0, SCR2))
        e('v_bfe_u32 v%d, v%d, 2, 3' % (T, L))
        e('v_lshlrev_b32 v%d, 9, v%d' % (T, T))
        e('v_and_b32 v%d, 3, v%d' % (T + 1, L))
        e('v_lshl_add_u32 v%d, v%d, 6, v%d' % (T, T + 1, T))
        e('v_bfe_u32 v%d, v%d, 2, 2' % (T + 1, L))
        e('v_lshrrev_b32 v%d, 5, v%d' % (T + 2, L))
        e('v_xor_b32 v%d, v%d, v%d' % (T + 1, T + 1, T + 2))
        e('v_lshl_add_u32 v%d, v%d, 4, v%d' % (T, T + 1, T))
        e('v_add_u32 v%d, s%d, v%d' % (T, S.T0, T))
        e('v_xor_b32 v%d, 32, v%d' % (T + 1, T))
        e('v_xor_b32 v%d, 16, v%d' % (T + 2, T))
        e('v_xor_b32 v%d, 48, v%d' % (T + 3, T))
        e('s_mov_b32 vcc_lo, 0')
        e('s_mov_b32 vcc_hi, -1')

        def pk(d, s):
            e('v_cvt_pk_bf16_f32 v%d, v%d, v%d' % (d, s, s + 1))
        for j in range(4):
            pk(B0 + j, AQ + 2 * j)
        for j in range(4):
            pk(B2 + j, AQ + 16 + 2 * j)
        WP = V.WPH

        def mf(d, ai, b, first=False):
            e('v_mfma_f32_32x32x16_bf16 %s, %s, %s, %s' % (vr(d, 16), vr(WP + 4 * ai, 4), vr(b, 4), '0' if first else vr(d, 16)))
        mf(D0, 0, B0, True)
        for j in range(2):
            pk(B13 + j, AQ + 8 + 2 * j)
            pk(B13 + 2 + j, AQ + 24 + 2 * j)
        mf(D1, 3, B0, True)
        for j in range(2):
            pk(R2 + j, AQ + 12 + 2 * j)
            pk(R2 + 2 + j, AQ + 28 + 2 * j)
        mf(D0, 1, B2)
        e('v_mul_f32 v%d, s%d, v%d' % (V.G1, NL2E, AQ + 28))
        e('v_mov_b32 v%d, 0x3f80' % (T + 4))
        e('v_cndmask_b32_e32 v%d, v%d, v%d, vcc' % (R2 + 2, R2 + 2, T + 4))
        e('v_cndmask_b32_e64 v%d, v%d, 0, vcc' % (R2 + 3, R2 + 3))
        mf(D1, 4, B2)
        e('v_exp_f32 v%d, v%d' % (V.G1, V.G1))
        e('ds_write_b128 v%d, %s offset:256' % (T, vr(B13, 4)))
        mf(D0, 2, B13)
        e('ds_write_b128 v%d, %s offset:256' % (T + 1, vr(R2, 4)))
        e('v_add_f32 v%d, 1.0, v%d' % (V.G1, V.G1))
        mf(D1, 5, B13)
        e('v_rcp_f32 v%d, v%d' % (V.G1, V.G1))
        self.g_addr(S.T2, None)
        e('v_lshlrev_b32 v%d, 2, v%d' % (T + 5, L))
        e('v_cndmask_b32_e64 v%d, v%d, %s, vcc' % (T + 5, T + 5, BIG))
        e('v_mov_b32 v%d, v%d' % (T + 4, V.G1))
        e('v_permlane32_swap_b32 v%d, v%d' % (T + 4, V.G1))
        e('buffer_store_dword v%d, v%d, %s, s%d offen sc1' % (V.G1, T + 5, srd(SRD_WS), S.T2), 'gst')
        P = [D0 + i for i in range(16)] + [D1 + i for i in range(4)]
        F = []
        MX, MN = T + 4, T + 5
        for op, M in (('max', MX), ('min', MN)):
            F.append('v_%s3_f32 v%d, v%d, v%d, v%d' % (op, M, P[0], P[1], P[2]))
        for i in range(3, 19, 2):
            for op, M in (('max', MX), ('min', MN)):
                F.append('v_%s3_f32 v%d, v%d, v%d, v%d' % (op, M, M, P[i], P[i + 1]))
        for op, M in (('max', MX), ('min', MN)):
            F.append('v_%s_f32 v%d, v%d, v%d' % (op, M, M, P[19]))
        F.append('v_mul_f32 v%d, s%d, v%d' % (MX, NL2E, MX))
        F.append('v_mul_f32 v%d, s%d, v%d' % (MN, L2E, MN))
        for i in range(20):
            F.append('v_fma_f32 v%d, v%d, s%d, v%d' % (EP + i, P[i], L2E, MX))
            F.append('v_fma_f32 v%d, v%d, s%d, v%d' % (EM + i, P[i], NL2E, MN))
            if i >= 1:
                F.append('v_exp_f32 v%d, v%d' % (EP + i - 1, EP + i - 1))
                F.append('v_exp_f32 v%d, v%d' % (EM + i - 1, EM + i - 1))
            if i == 3:
                F.append('v_add_f32 v%d, v%d, v%d' % (T + 6, EP, EP + 1))
                F.append('v_add_f32 v%d, v%d, v%d' % (T + 7, EM, EM + 1))
            elif i > 3:
                F.append('v_add_f32 v%d, v%d, v%d' % (T + 6, T + 6, EP + i - 2))
                F.append('v_add_f32 v%d, v%d, v%d' % (T + 7, T + 7, EM + i - 2))
        F.append('v_exp_f32 v%d, v%d' % (EP + 19, EP + 19))
        F.append('v_exp_f32 v%d, v%d' % (EM + 19, EM + 19))
        for i in (18, 19):
            F.append('v_add_f32 v%d, v%d, v%d' % (T + 6, T + 6, EP + i))
            F.append('v_add_f32 v%d, v%d, v%d' % (T + 7, T + 7, EM + i))
        F.append('v_rcp_f32 v%d, v%d' % (T + 6, T + 6))
        F.append('v_rcp_f32 v%d, v%d' % (T + 7, T + 7))
        E = [EP + i for i in range(20)] + [EM + i for i in range(20)]
        waddr = [(T, 0), (T + 2, 0), (T + 1, 0), (T + 3, 0), (T, 256)]
        for gq in range(5):
            for j in range(8):
                x = E[8 * gq + j]
                F.append('v_mul_f32 v%d, v%d, v%d' % (x, x, T + 6 if 8 * gq + j < 20 else T + 7))
            for j in range(4):
                F.append('v_cvt_pk_bf16_f32 v%d, v%d, v%d' % (PH + 4 * gq + j, E[8 * gq + 2 * j], E[8 * gq + 2 * j + 1]))

            def wr(gq=gq):
                e('s_mov_b32 exec_hi, 0')
                e('ds_write_b128 v%d, %s offset:%d' % (waddr[gq][0], vr(PH + 4 * gq, 4), waddr[gq][1]))
                e('s_mov_b32 exec_hi, -1')
            F.append(wr)
        n = 0
        while F:
            self.emit_fill(F, 1)
            n += 1
            if D and n % o.actgap == 0:
                D.pop(0)()
        self.run(D)
        for j in range(4):
            e('v_permlane32_swap_b32 v%d, v%d' % (PH + j, PH + 4 + j))
            e('v_permlane32_swap_b32 v%d, v%d' % (PH + 8 + j, PH + 12 + j))
            e('v_cndmask_b32_e64 v%d, 0, v%d, vcc' % (PH + 16 + j, PH + 16 + j))
        a.wait_lg(0)
        a.barrier()
        self.stamp('e2')
        lj = a.newlabel('L_KV')
        e('s_cmp_ge_u32 s%d, 4' % S.W)
        e('s_cbranch_scc1 %s' % lj)
        snap = a.snapshot()
        HH, FT = S.T0, S.T1
        e('s_lshr_b32 s%d, s%d, 1' % (HH, S.W))
        e('s_and_b32 s%d, s%d, 1' % (FT, S.W))
        e('s_lshl_b32 s%d, s%d, 14' % (S.T2, HH))
        e('s_add_u32 s%d, s%d, %d' % (S.T2, S.T2, SCR2))
        e('s_lshl_b32 s%d, s%d, 8' % (S.T3, FT))
        e('s_add_u32 s%d, s%d, s%d' % (S.T3, S.T3, S.T2))
        e('v_lshrrev_b32 v%d, 5, v%d' % (T + 4, L))
        e('v_lshlrev_b32 v%d, 10, v%d' % (T + 5, T + 4))
        e('v_bfe_u32 v%d, v%d, 2, 2' % (T + 6, L))
        e('v_lshl_add_u32 v%d, v%d, 6, v%d' % (T + 5, T + 6, T + 5))
        e('v_and_b32 v%d, 1, v%d' % (T + 6, L))
        e('v_lshl_add_u32 v%d, v%d, 3, v%d' % (T + 5, T + 6, T + 5))
        e('v_bfe_u32 v%d, v%d, 4, 1' % (T + 6, L))
        e('v_bfe_u32 v%d, v%d, 1, 1' % (T + 7, L))
        e('v_lshl_add_u32 v%d, v%d, 1, v%d' % (T + 6, T + 6, T + 7))
        e('v_add_u32 v%d, 1, v%d' % (T + 7, T + 6))
        e('v_and_b32 v%d, 3, v%d' % (T + 7, T + 7))
        e('v_lshlrev_b32 v%d, 1, v%d' % (T + 4, T + 4))
        e('v_xor_b32 v%d, v%d, v%d' % (T + 6, T + 6, T + 4))
        e('v_xor_b32 v%d, v%d, v%d' % (T + 7, T + 7, T + 4))
        e('v_lshl_add_u32 v%d, v%d, 4, v%d' % (T + 6, T + 6, T + 5))
        e('v_lshl_add_u32 v%d, v%d, 4, v%d' % (T + 7, T + 7, T + 5))
        e('v_add_u32 v%d, s%d, v%d' % (T, S.T3, T + 6))
        e('v_add_u32 v%d, s%d, v%d' % (T + 2, S.T2, T + 7))
        e('v_xor_b32 v%d, 16, v%d' % (T + 1, T))
        e('v_xor_b32 v%d, 16, v%d' % (T + 3, T + 2))
        KB = [64, 200]
        KD = 96

        def kr(s):
            b = KB[(s >> 2) & 1] + 8 * (s & 3)
            for i in range(2):
                e('ds_read_b64_tr_b16 %s, v%d offset:%d' % (vr(b + 2 * i, 2), T + i, s * 2048 + i * 512))
            for i in range(2):
                e('ds_read_b64_tr_b16 %s, v%d offset:%d' % (vr(b + 4 + 2 * i, 2), T + 2 + i, s * 2048 + i * 512 + 256))
        for s in range(3):
            kr(s)
        e('s_lshl_b32 s%d, s%d, 4' % (S.T2, S.C))
        e('s_add_u32 s%d, s%d, s%d' % (S.T2, S.T2, S.R))
        e('s_mul_i32 s%d, s%d, %d' % (S.T2, S.T2, KVP_STRIDE))
        e('s_mul_i32 s%d, s%d, 1680' % (S.T3, HH))
        e('s_add_u32 s%d, s%d, s%d' % (S.T2, S.T2, S.T3))
        e('s_mul_i32 s%d, s%d, 1344' % (S.T3, FT))
        e('s_add_u32 s%d, s%d, s%d' % (S.T2, S.T2, S.T3))
        e('s_add_u32 s%d, s%d, %d' % (S.T2, S.T2, KVP_OFF))
        e('s_cmp_eq_u32 s%d, 0' % FT)
        e('s_cselect_b32 s%d, s%d, s%d' % (S.T3, S.T2, BIGS))
        e('s_mov_b32 vcc_lo, 0x1fffff')
        e('s_cselect_b32 vcc_hi, 0x1fffff, 0')
        e('v_and_b32 v%d, 31, v%d' % (T + 4, L))
        e('v_lshrrev_b32 v%d, 5, v%d' % (T + 5, L))
        e('v_mul_u32_u24 v%d, 21, v%d' % (T + 5, T + 5))
        e('v_add_lshl_u32 v%d, v%d, v%d, 4' % (T + 4, T + 4, T + 5))
        e('v_cndmask_b32_e64 v%d, %s, v%d, vcc' % (T + 4, BIG, T + 4))
        for s in range(8):
            if s + 3 < 8:
                kr(s + 3)
            b = KB[(s >> 2) & 1] + 8 * (s & 3)
            e('v_mfma_f32_32x32x16_bf16 %s, %s, %s, %s' % (vr(KD, 16), vr(b, 4), vr(b + 4, 4), '0' if s == 0 else vr(KD, 16)))
        KP = 64
        for j in range(8):
            pk(KP + j, KD + 2 * j)
        for h in range(2):
            for j in range(2):
                e('v_permlane32_swap_b32 v%d, v%d' % (KP + 4 * h + j, KP + 4 * h + 2 + j))
            e('buffer_store_dwordx4 %s, v%d, %s, s%d offen offset:%d sc1' % (vr(KP + 4 * h, 4), T + 4, srd(SRD_WS), S.T3 if h else S.T2, 672 * h), 'kvst')
        end = a.snapshot()
        a.label(lj)
        a.merge(snap, end)

    def retry(self, chk, reload, maxit=2000):
        a, e = self.a, self.e
        lo, ld = a.newlabel('L_RL'), a.newlabel('L_RD')
        chk()
        e('s_mov_b32 s%d, %d' % (S.CNT, maxit))
        e('s_cbranch_vccz %s' % ld)
        snap = a.snapshot()
        a.label(lo)
        e('s_sleep %d' % self.o.rsleep)
        reload()
        a.wait_vm(0)
        e('s_sub_u32 s%d, s%d, 1' % (S.CNT, S.CNT))
        e('s_cmp_eq_u32 s%d, 0' % S.CNT)
        e('s_cbranch_scc1 %s' % ld)
        chk()
        e('s_cbranch_vccnz %s' % lo)
        end = a.snapshot()
        a.label(ld)
        a.merge(snap, end)

    def chk_regs(self, regs, t):
        e = self.e
        regs = list(regs)
        if len(regs) == 1:
            e('v_cmp_eq_u32 vcc, -1, v%d' % regs[0])
            return
        if len(regs) % 2 == 0:
            e('v_max_u32 v%d, v%d, v%d' % (t, regs[0], regs[1]))
            regs = regs[2:]
        else:
            e('v_max3_u32 v%d, v%d, v%d, v%d' % (t, regs[0], regs[1], regs[2]))
            regs = regs[3:]
        while regs:
            e('v_max3_u32 v%d, v%d, v%d, v%d' % (t, t, regs[0], regs[1]))
            regs = regs[2:]
        e('v_cmp_eq_u32 vcc, -1, v%d' % t)

    KL, SM, OD = 64, 96, 96
    SAREA = 122880

    def kv_loads(self):
        L = []
        KA = 53

        def first():
            e = self.e
            e('s_lshr_b32 s%d, s%d, 2' % (S.KVS, S.W))
            e('s_lshl_b32 s%d, s%d, 3' % (S.KVS, S.KVS))
            e('s_lshl_b32 s%d, s%d, 4' % (S.D0, S.C))
            e('s_add_u32 s%d, s%d, s%d' % (S.KVS, S.KVS, S.D0))
            e('s_mul_i32 s%d, s%d, %d' % (S.KVS, S.KVS, KVP_STRIDE))
            e('s_add_u32 s%d, s%d, %d' % (S.KVS, S.KVS, KVP_OFF))
            e('s_lshl_b32 s%d, s%d, 10' % (S.D0, S.PT))
            e('v_add_u32 v%d, s%d, v%d' % (KA, S.D0, V.L16))
            e('v_cmp_gt_u32 vcc, %d, v%d' % (3360, KA))
            e('v_cndmask_b32_e64 v%d, %s, v%d, vcc' % (KA, BIG, KA))
        for j in range(8):
            def f(j=j):
                if j == 0:
                    first()
                self.kv_load1(j)
            L.append(f)
        return L

    def kv_load1(self, j):
        e = self.e
        e('s_add_u32 s%d, s%d, %d' % (S.D0, S.KVS, j * KVP_STRIDE))
        e('buffer_load_dwordx4 %s, v53, %s, s%d offen sc1' % (vr(self.KL + 4 * j, 4), srd(SRD_WS), S.D0), 'kvl')

    def o_stage(self):
        a, e, o = self.a, self.e, self.o
        L = V.LANE
        KL, SM, OD = self.KL, self.SM, self.OD
        T = 104
        e('v_bfe_u32 v%d, v%d, 3, 1' % (T, L))
        e('v_and_b32 v%d, 3, v%d' % (T + 1, L))
        e('v_lshl_add_u32 v%d, v%d, 2, v%d' % (T, T, T + 1))
        e('v_and_b32 v%d, 16, v%d' % (T + 1, L))
        e('v_add_u32 v%d, v%d, v%d' % (T, T, T + 1))
        e('v_bfe_u32 v%d, v%d, 2, 1' % (T + 1, L))
        e('v_lshl_add_u32 v%d, v%d, 3, v%d' % (T, T + 1, T))
        e('v_min_u32 v%d, 20, v%d' % (T, T))
        e('s_mul_i32 s%d, s%d, 1680' % (S.T0, S.FH))
        e('s_add_u32 s%d, s%d, %d' % (S.T0, S.T0, self.SAREA))
        e('v_lshlrev_b32 v%d, 4, v%d' % (T, T))
        e('v_add_u32 v%d, s%d, v%d' % (54, S.T0, T))
        e('v_lshrrev_b32 v%d, 5, v%d' % (T + 1, L))
        e('v_mul_u32_u24 v%d, 336, v%d' % (T + 1, T + 1))
        e('v_add_u32 v%d, v%d, v%d' % (55, 54, T + 1))
        e('s_lshl_b32 s%d, s%d, 10' % (S.T0, S.W))
        e('s_add_u32 s%d, s%d, %d' % (S.T0, S.T0, self.SAREA))
        e('v_add_u32 v%d, s%d, v%d' % (T + 1, S.T0, V.L16))
        e('s_mov_b32 s%d, 0x3f80' % S.T1)
        e('s_mov_b32 s%d, 0x3f800000' % S.T2)
        self.retry(lambda: self.chk_regs([KL + 4 * j for j in range(8)], T), lambda: [self.kv_load1(j) for j in range(8)])
        for j in range(8):
            for d in range(4):
                for h in range(2):
                    e('v_dot2_f32_bf16 v%d, v%d, s%d, %s' % (SM + 2 * d + h, KL + 4 * j + d, S.T1 + h, '0' if j == 0 else 'v%d' % (SM + 2 * d + h)))
        for d in range(4):
            e('v_cvt_pk_bf16_f32 v%d, v%d, v%d' % (KL + d, SM + 2 * d, SM + 2 * d + 1))
        e('ds_write_b128 v%d, %s' % (T + 1, vr(KL, 4)))
        a.wait_lg(0)
        a.barrier()
        AF = 64
        for hf in range(2):
            for s in range(3):
                e('ds_read_b128 %s, v%d offset:%d' % (vr(AF + 12 * hf + 4 * s, 4), 55 if s < 2 else 54, hf * 4096 + (672 * s if s < 2 else 1344)))
        self.act_base(S.T0, 88, 89)
        e('s_mul_i32 s%d, s%d, 1280' % (S.T1, S.C))
        e('s_add_u32 s%d, s%d, s%d' % (S.T0, S.T0, S.T1))
        e('s_add_u32 s%d, s%d, %d' % (S.T0, S.T0, 54 * 1024))
        e('s_lshl_b32 s%d, s%d, 9' % (S.T1, S.FH))
        e('s_add_u32 s%d, s%d, s%d' % (S.T1, S.T1, S.T0))
        e('s_lshl_b32 s%d, s%d, 3' % (S.T2, S.FH))
        e('s_add_u32 s%d, s%d, s%d' % (S.T0, S.T0, S.T2))
        e('v_cmp_gt_u32 vcc, 32, v%d' % L)
        e('v_cndmask_b32_e64 v89, %s, v88, vcc' % BIG)
        PQ = [48, 56, 60]
        n = 0
        for hf in range(2):
            for s in range(3):
                e('v_mfma_f32_32x32x16_bf16 %s, %s, %s, %s' % (vr(OD, 16), vr(AF + 12 * hf + 4 * s, 4), vr(PQ[s], 4), '0' if n == 0 else vr(OD, 16)))
                n += 1
        a.wait_lg(0)
        a.barrier()
        e('v_add_f32 v90, 0x%08x, v%d' % (f2u(1e-6), OD + 12))
        e('v_rcp_f32 v90, v90')
        e('v_mul_f32 v90, v90, v%d' % V.G1)
        for j in range(12):
            e('v_mul_f32 v%d, v%d, v90' % (OD + j, OD + j))
        for j in range(6):
            e('v_cvt_pk_bf16_f32 v%d, v%d, v%d' % (AF + j, OD + 2 * j, OD + 2 * j + 1))
        e('buffer_store_dwordx4 %s, v88, %s, s%d offen sc1' % (vr(AF, 4), srd(SRD_WS), S.T1), 'ost')
        e('buffer_store_dwordx2 %s, v89, %s, s%d offen offset:1024 sc1' % (vr(AF + 4, 2), srd(SRD_WS), S.T0), 'ost')

    G4 = 72

    def g_loads(self):
        e = self.e
        e('s_lshl_b32 s%d, s%d, 8' % (S.KVS, S.RB))
        e('s_add_u32 s%d, s%d, %d' % (S.KVS, S.KVS, G_OFF))
        e('v_and_b32 v53, 15, v%d' % V.LANE)
        e('v_lshlrev_b32 v53, 2, v53')
        self.g_load1()

    def g_load1(self):
        for tt in range(4):
            self.e('buffer_load_dword v%d, v53, %s, s%d offen offset:%d sc1' % (self.G4 + tt, srd(SRD_WS), S.KVS, 64 * tt), 'gl')

    def wp_read(self, i):
        L = [lambda: self.a.wait_vm_tag('W%d' % i)]
        for T in range(5):
            L.append('ds_read_b128 %s, v%d offset:%d' % (vr(V.WB + 20 * (i & 1) + 4 * T, 4), V.M7 if i % 3 < 2 else 0, (i % 3 & 1) * 40960 + 1024 * T))
        return L

    def phase2(self):
        a, e, o = self.a, self.e, self.o
        NR = 10
        e('v_add_u32 v%d, s%d, v%d' % (V.M7, S.W5K, V.L16))
        e('v_add_u32 v0, %d, v%d' % (81920, V.M7))
        self.emit_fill(self.wp_read(0), 99)
        issue_act = {}
        for i in range(o.nact0, NR):
            issue_act.setdefault(i - 4 if i < 7 else max(i - o.olag, i - 4), []).append(i)
        for i in range(NR):
            if i >= 7:
                regs = [V.ACTB + 16 * (i & 3) + 4 * tt + d for tt in range(4) for d in (0, 2)]
                self.retry(lambda: self.chk_regs(regs, 76), lambda: self.run(self.load_act(i)))
            F = []
            if i + 3 < NR:
                F += self.load_wp(i + 3)
            if i + 1 < NR:
                F += self.wp_read(i + 1)
            if i == o.kvr:
                F += self.kv_loads()
            if i == o.gr:
                F.append(self.g_loads)
            A = []
            for j in issue_act.get(i, []):
                A.append((j, self.load_act(j)))
            for j, la in A:
                if j - 4 != i:
                    F += la
            for tt in range(4):
                for T in range(5):
                    acc = vr(V.ACC2 + 20 * tt + 4 * T, 4)
                    e('v_mfma_f32_16x16x32_bf16 %s, %s, %s, %s' % (acc, vr(V.WB + 20 * (i & 1) + 4 * T, 4), vr(V.ACTB + 16 * (i & 3) + 4 * tt, 4), '0' if i == 0 else acc))
                    self.emit_fill(F, 1)
                for j, la in A:
                    if j - 4 == i:
                        la[tt]()
            self.emit_fill(F, 99)
            if i == o.ors:
                self.o_stage()
                if o.stop == 'o':
                    return
            if i == 6:
                G4 = self.G4
                self.retry(lambda: self.chk_regs([G4 + tt for tt in range(4)], 76), self.g_load1)
                for tt in range(4):
                    e('v_sub_f32 v%d, 1.0, v%d' % (G4 + tt, G4 + tt))
                for tt in range(4):
                    for j in range(20):
                        e('v_mul_f32 v%d, v%d, v%d' % (V.ACC2 + 20 * tt + j, V.ACC2 + 20 * tt + j, G4 + tt))
            if True:
                self.stamp('r%d' % i)
        L = V.LANE
        T = 64
        e('v_and_b32 v%d, 15, v%d' % (T, L))
        e('v_lshrrev_b32 v%d, 5, v%d' % (T + 1, L))
        e('v_xor_b32 v%d, v%d, v%d' % (T, T, T + 1))
        e('v_lshlrev_b32 v%d, 4, v%d' % (T, T))
        e('v_lshrrev_b32 v%d, 4, v%d' % (T + 1, L))
        e('v_lshl_add_u32 v%d, v%d, 8, v%d' % (T, T + 1, T))
        e('v_add_u32 v%d, s%d, v%d' % (T, S.W5K, T))
        for t in range(1, 5):
            e('v_xor_b32 v%d, %d, v%d' % (T + t, t << 5, T))
        for t in range(5):
            e('v_add_u32 v%d, %d, v%d' % (T + 5 + t, 81920, T + t))
        for tt in range(4):
            for t in range(5):
                e('ds_write_b128 v%d, %s offset:%d' % (T + 5 * (tt >> 1) + t, vr(V.ACC2 + 20 * tt + 4 * t, 4), (tt & 1) * 40960 + t * 1024))
        R = 80
        e('s_lshr_b32 s%d, s%d, 1' % (S.T0, S.W))
        e('s_mul_i32 s%d, s%d, 40960' % (S.T0, S.T0))
        e('s_and_b32 s%d, s%d, 1' % (S.T1, S.W))
        e('s_lshl_b32 s%d, s%d, 3' % (S.T1, S.T1))
        e('s_lshl_b32 s%d, s%d, 3' % (S.T2, S.RB))
        e('s_add_u32 s%d, s%d, s%d' % (S.T2, S.T2, S.W))
        e('s_mul_i32 s%d, s%d, %d' % (S.T2, S.T2, 8 * 1280))
        e('s_mul_i32 s%d, s%d, 160' % (S.T3, S.CB))
        e('s_add_u32 s%d, s%d, s%d' % (S.T2, S.T2, S.T3))
        for p in range(2):
            ix, row, c10, la, ga = R + 8 * p, R + 8 * p + 1, R + 8 * p + 2, R + 8 * p + 3, R + 8 * p + 4
            if p == 0:
                e('v_mov_b32 v%d, v%d' % (ix, L))
            else:
                e('v_and_b32 v%d, 15, v%d' % (ix, L))
                e('v_add_u32 v%d, 64, v%d' % (ix, ix))
            e('v_mul_u32_u24 v%d, 205, v%d' % (row, ix))
            e('v_lshrrev_b32 v%d, 11, v%d' % (row, row))
            e('v_mul_u32_u24 v%d, 10, v%d' % (c10, row))
            e('v_sub_u32 v%d, v%d, v%d' % (c10, ix, c10))
            e('v_mul_u32_u24 v%d, 1280, v%d' % (ga, row))
            e('v_lshl_add_u32 v%d, v%d, 4, v%d' % (ga, c10, ga))
            e('v_add_u32 v%d, s%d, v%d' % (row, S.T1, row))
            e('v_xor_b32 v%d, v%d, v%d' % (row, row, c10))
            e('v_lshlrev_b32 v%d, 9, v%d' % (la, c10))
            e('v_lshl_add_u32 v%d, v%d, 4, v%d' % (la, row, la))
            e('v_add_u32 v%d, s%d, v%d' % (la, S.T0, la))
            if p == 1:
                e('v_cmp_gt_u32 vcc, 16, v%d' % L)
                e('v_cndmask_b32_e64 v%d, %s, v%d, vcc' % (ga, BIG, ga))
        a.wait_lg(0)
        a.barrier()
        self.stamp('red')
        RB_ = [112, 176]
        for p in range(2):
            la = R + 8 * p + 3
            if p == 1:
                e('s_mov_b64 exec, 0xffff')
            for sw in range(8):
                for q in range(2):
                    e('ds_read_b128 %s, v%d offset:%d' % (vr(RB_[p] + 8 * sw + 4 * q, 4), la, sw * 5120 + q * 256))
            if p == 1:
                e('s_mov_b64 exec, -1')
        for p in range(2):
            b = RB_[p]
            for st in (1, 2, 4):
                for sw in range(0, 8, 2 * st):
                    for j in range(8):
                        e('v_add_f32 v%d, v%d, v%d' % (b + 8 * sw + j, b + 8 * sw + j, b + 8 * (sw + st) + j))
            for j in range(4):
                e('v_cvt_pk_bf16_f32 v%d, v%d, v%d' % (b + j, b + 2 * j, b + 2 * j + 1))
            e('buffer_store_dwordx4 %s, v%d, %s, s%d offen' % (vr(b, 4), R + 8 * p + 4, srd(SRD_OUT), S.T2), 'out')

    def epilogue_end(self):
        a, e, o = self.a, self.e, self.o
        if o.stamps:
            self.stamp('end')
            a.wait_lg(0)
            n = self.nstamp
            e('s_lshl_b32 s%d, s2, 3' % S.T0)
            e('s_add_u32 s%d, s%d, s%d' % (S.T0, S.T0, S.W))
            e('s_mul_i32 s%d, s%d, 64' % (S.T0, S.T0))
            e('s_add_u32 s%d, s%d, %d' % (S.T0, S.T0, STAMP_OFF))
            e('v_cmp_eq_u32 vcc, 0, v%d' % V.LANE)
            e('v_cndmask_b32_e64 v10, %s, 0, vcc' % BIG)
            for j in range(n):
                e('v_mov_b32 v8, s%d' % (S.STAMP + 2 * j))
                e('v_mov_b32 v9, s%d' % (S.STAMP + 2 * j + 1))
                e('buffer_store_dwordx2 v[8:9], v10, %s, s%d offen offset:%d' % (srd(SRD_WS), S.T0, 8 * j))
                e('s_nop 1')
        a.wait_vm(0)
        a.label('L_END')
        e('s_endpgm')
        a.label('L_CODE_END')

    def build(self):
        a, o = self.a, self.o
        a.raw('; @launch grid=(256,1,1) block=(512,1,1) lds=163840')
        a.raw('.amdgcn_target "amdgcn-amd-amdhsa--gfx950"')
        a.raw('.text')
        a.raw('.globl %s' % KLABEL)
        a.raw('.p2align 8')
        a.raw('.type %s,@function' % KLABEL)
        a.label(KLABEL)
        self.body()
        self.epilogue_end()
        a.raw('.section .rodata,"a"')
        a.raw('.p2align 6')
        a.raw('.amdhsa_kernel %s' % KLABEL)
        a.raw('  .amdhsa_next_free_vgpr 256')
        a.raw('  .amdhsa_next_free_sgpr 102')
        a.raw('  .amdhsa_accum_offset 256')
        a.raw('  .amdhsa_group_segment_fixed_size 0')
        a.raw('  .amdhsa_kernarg_size 88')
        a.raw('  .amdhsa_user_sgpr_count 2')
        a.raw('  .amdhsa_user_sgpr_kernarg_segment_ptr 1')
        a.raw('  .amdhsa_system_sgpr_workgroup_id_x 1')
        a.raw('.end_amdhsa_kernel')
        assert a.maxv <= 256 and a.maxs <= 102, (a.maxv, a.maxs)
        return a.text()

    def body(self):
        a, e, o = self.a, self.e, self.o
        self.prologue()
        self.phase0()
        self.hq_setup()
        self.stamp('h0')
        self.hq_pass()
        self.stamp('qend')
        if o.stop == 'h':
            a.wait_vm(0)
            self.epoch_store()
            return
        self.q_epilogue()
        if o.stop == 'q':
            a.wait_vm(0)
            self.epoch_store()
            return
        self.phase2()
        self.epoch_store()

    def epoch_store(self):
        e = self.e
        e('s_or_b32 s%d, s2, s%d' % (S.T0, S.W))
        e('s_cmp_eq_u32 s%d, 0' % S.T0)
        e('s_cselect_b32 s%d, %d, s%d' % (S.T0, EPOCH_OFF, BIGS))
        self.flag_store(S.T0, 'ep', 8)


def main():
    ap = argparse.ArgumentParser()
    ap.add_argument('-o', default='k.s')
    ap.add_argument('--stop', default='')
    ap.add_argument('--stamps', type=int, default=0)
    ap.add_argument('--rot', type=int, default=1)
    ap.add_argument('--codepf', type=int, default=1)
    ap.add_argument('--nfirst', type=int, default=2)
    ap.add_argument('--psleep', type=int, default=8)
    ap.add_argument('--stu', type=lambda s: [int(x) for x in s.split(',')], default=[0, 9])
    ap.add_argument('--dbg', default='')
    ap.add_argument('--bearly', type=int, default=0)
    ap.add_argument('--bu', type=int, default=0)
    ap.add_argument('--afu', type=int, default=1)
    ap.add_argument('--bfu', type=int, default=4)
    ap.add_argument('--apu', type=int, default=4)
    ap.add_argument('--rstu', type=int, default=3)
    ap.add_argument('--hpu', type=int, default=19)
    ap.add_argument('--nact0', type=int, default=4)
    ap.add_argument('--actgap', type=int, default=10)
    ap.add_argument('--str', dest='str_', type=lambda s: [int(x) for x in s.split(',')], default=[])
    ap.add_argument('--rsleep', type=int, default=4)
    ap.add_argument('--olag', type=int, default=2)
    ap.add_argument('--kvr', type=int, default=2)
    ap.add_argument('--ors', type=int, default=3)
    ap.add_argument('--gr', type=int, default=5)
    ap.add_argument('--st', type=lambda s: s.split(','), default='start,u0,u9,qend,e2,r3,red,end'.split(','))
    ap.add_argument('--vbud', type=int, default=20)
    ap.add_argument('--npre', type=int, default=2)
    ap.add_argument('--dpos', type=lambda s: [int(x) for x in s.split(',')], default=[0, 2, 4, 6])
    ap.add_argument('--hfstep', type=int, default=74)
    ap.add_argument('--p0bar', type=int, default=1)
    o = ap.parse_args()
    g = Gen(o)
    t = g.build()
    open(o.o, 'w').write(t)
    print('instructions', g.a.stats, 'maxv', g.a.maxv, 'maxs', g.a.maxs, file=sys.stderr)


if __name__ == '__main__':
    main()
```
